```python
import torch

def _softmax(x, axis=-1):
    return torch.softmax(x, dim=axis)

def _gelu(x):
    return torch.nn.functional.gelu(x, approximate='tanh')

def _silu(x):
    return torch.nn.functional.silu(x)

def _sigmoid(x):
    return torch.sigmoid(x)

def _layernorm(x, axis=-1, eps=1e-05):
    m = x.mean(dim=axis, keepdim=True)
    v = x.var(dim=axis, keepdim=True, unbiased=False)
    return (x - m) / torch.sqrt(v + eps)

def _scatter_add(tgt, idx, src, axis=0):
    return tgt.clone().index_add_(axis, idx, src)

def _segment_sum(src, seg, n):
    out = torch.zeros((n,) + src.shape[1:], dtype=src.dtype)
    return out.index_add_(0, seg, src)

def _pad(x, pw):
    flat = tuple((v for pair in reversed(pw) for v in pair))
    return torch.nn.functional.pad(x, flat)
kernel_name = 'concat_heads__sliding_block__memory_aug_recurrent_mem_tr__prompt'

def setup_inputs():

    _w = lambda a: (lambda t: t.to(torch.bfloat16) if t.is_floating_point() else t)(torch.as_tensor(a))

    def _A_setup():
        B, S, D = (1, 2048, 1024)
        return {'x': _w((lambda *s: torch.randn(*s, dtype=torch.bfloat16) * 0.2)(B, S, D)), 'wqkv': _w((lambda *s: torch.randn(*s, dtype=torch.bfloat16) * 0.2)(D, 3 * D)), 'wo': _w((lambda *s: torch.randn(*s, dtype=torch.bfloat16) * 0.05)(D, D))}
    _A_in = _A_setup()

    def _B_setup():
        B, S, Dm = (1, 2048, 1024)
        H, Dh = (32, 128)
        M, seg = (8, 32)
        seg = min(seg, S)
        S = S // seg * seg
        return {'x': _w((lambda *s: torch.randn(*s, dtype=torch.bfloat16) * 0.05)(B, S, Dm)), 'mem0': _w((lambda *s: torch.randn(*s, dtype=torch.bfloat16) * 1.6)(B, M, Dm)), 'Wq': _w((lambda *s: torch.randn(*s, dtype=torch.bfloat16) * 0.8)(Dm, H, Dh) * Dm ** (-0.5)), 'Wk': _w((lambda *s: torch.randn(*s, dtype=torch.bfloat16) * 0.8)(Dm, H, Dh) * Dm ** (-0.5)), 'Wv': _w((lambda *s: torch.randn(*s, dtype=torch.bfloat16) * 1.6)(Dm, H, Dh) * Dm ** (-0.5)), 'Wo': _w((lambda *s: torch.randn(*s, dtype=torch.bfloat16) * 1.6)(H, Dh, Dm) * (H * Dh) ** (-0.5)), 'seg_len': seg}
    _B_in = _B_setup()
    return {'A_x': _A_in['x'], 'A_wqkv': _A_in['wqkv'], 'A_wo': _A_in['wo'], 'B_x': _B_in['x'], 'B_mem0': _B_in['mem0'], 'B_Wq': _B_in['Wq'], 'B_Wk': _B_in['Wk'], 'B_Wv': _B_in['Wv'], 'B_Wo': _B_in['Wo'], 'B_seg_len': _B_in['seg_len']}

def reference(A_x, A_wqkv, A_wo, B_x, B_mem0, B_Wq, B_Wk, B_Wv, B_Wo, B_seg_len):

    def _A_ref(x, wqkv, wo):
        B, S, D = x.shape
        H = 32
        Dh = D // H
        W = 256
        qkv = (lambda x, *d: x.permute(*d))((x @ wqkv).reshape(B, S, 3, H, Dh), 2, 0, 3, 1, 4)
        q, k, v = (qkv[0], qkv[1], qkv[2])
        scores = torch.einsum('bhqd,bhkd->bhqk', q, k) * Dh ** (-0.5)
        idx = torch.arange(S)
        mask = (idx[:, None] - idx[None, :] >= 0) & (idx[:, None] - idx[None, :] < W)
        scores = torch.where(mask[None, None], scores, -1000000000.0)
        p = _softmax(scores, axis=-1)
        o = torch.einsum('bhqk,bhkd->bhqd', p, v)
        return (lambda x, *d: x.permute(*d))(o, 0, 2, 1, 3).reshape(B, S, D) @ wo

    def _B_ref(x, mem0, Wq, Wk, Wv, Wo, seg_len):
        B, S, Dm = x.shape
        H, Dh = (Wq.shape[1], Wq.shape[2])
        M = mem0.shape[1]
        scale = Dh ** (-0.5)
        n_seg = S // seg_len
        L = M + seg_len
        idx = torch.arange(L)
        mask = (idx[:, None] < M) | (idx[:, None] >= idx[None, :])
        mem = mem0
        outs = []
        for s in range(n_seg):
            xs = x[:, s * seg_len:(s + 1) * seg_len, :].clone()
            h = torch.concatenate([mem, xs], axis=1)
            q = torch.einsum('btd,dhe->bhte', h, Wq)
            k = torch.einsum('btd,dhe->bhte', h, Wk)
            v = torch.einsum('btd,dhe->bhte', h, Wv)
            scores = torch.einsum('bhqe,bhke->bhqk', q, k) * scale
            scores = torch.where(mask[None, None], scores, -1000000000.0)
            p = _softmax(scores, axis=-1)
            o = torch.einsum('bhqk,bhke->bhqe', p, v)
            o = torch.einsum('bhte,hed->btd', o, Wo)
            mem = o[:, :M, :].clone()
            outs.append(o[:, M:, :])
        return torch.concatenate(outs, axis=1)
    a = _A_ref(A_x, A_wqkv, A_wo)
    b = _B_ref(B_x, B_mem0, B_Wq, B_Wk, B_Wv, B_Wo, B_seg_len)
    return torch.concatenate([a, b], axis=-1)
```

```python
import sys

MiB = 1 << 20
QKVA_OFF = 0
QKVB_OFF = 12 * MiB
OA_OFF = 60 * MiB
OB_OFF = 64 * MiB
MEMKV_OFF = 80 * MiB
HAND_OFF = 96 * MiB

KA = dict(A_x=0, A_wqkv=8, A_wo=16, B_x=24, B_mem0=32, B_Wq=40, B_Wk=48, B_Wv=56, B_Wo=64,
          seg=72, out=80, dbg=88, ws=96)


class K:
    def __init__(self, name):
        self.name = name
        self.L = []
        self.lbl = 0

    def e(self, s):
        import re
        m = re.search(r"offset:(\d+)", s)
        if m and s.startswith("buffer_"):
            assert int(m.group(1)) < 4096, s
        if m and s.startswith("ds_"):
            assert int(m.group(1)) < 65536, s
        self.L.append("    " + s)

    def label(self, s):
        self.L.append(s + ":")

    def newlabel(self, p="L"):
        self.lbl += 1
        return f"{self.name}_{p}{self.lbl}"

    def text(self):
        return "\n".join(self.L)


def kernel_wrap(k, vgprs, sgprs=102, lds_unused=0):
    acc = (vgprs + 3) // 4 * 4
    return f"""
.text
.globl {k.name}
.p2align 8
.type {k.name},@function
{k.name}:
{k.text()}
    s_endpgm
.section .rodata,"a"
.p2align 6
.amdhsa_kernel {k.name}
  .amdhsa_next_free_vgpr {vgprs}
  .amdhsa_next_free_sgpr {sgprs}
  .amdhsa_accum_offset {acc}
  .amdhsa_group_segment_fixed_size 0
  .amdhsa_kernarg_size 104
  .amdhsa_user_sgpr_count 2
  .amdhsa_user_sgpr_kernarg_segment_ptr 1
  .amdhsa_system_sgpr_workgroup_id_x 1
.end_amdhsa_kernel
"""


def srd(k, s, base_lo, base_hi, nrec="0x7ffffff0"):
    k.e(f"s_mov_b32 s{s}, s{base_lo}")
    k.e(f"s_and_b32 s{s+1}, s{base_hi}, 0xffff")
    k.e(f"s_mov_b32 s{s+2}, {nrec}")
    k.e(f"s_mov_b32 s{s+3}, 0x00020000")


def gemm_kernel(name, BM, BN, WM, WN, decode, ntiles, pre=None):
    k = K(name)
    NW = WM * WN
    WTM, WTN = BM // WM, BN // WN
    MT, NT = WTM // 16, WTN // 16
    A_BYTES = BM * 128
    B_BYTES = 64 * BN * 2
    STG = A_BYTES + B_BYTES
    nA = BM // 8 // NW
    RPI = 1024 // (BN * 2)
    nB = 64 // RPI // NW
    ACC = 0
    XF = ACC + MT * NT * 4
    WF = XF + MT * 4
    VA = WF + NT * 4
    VB = VA + 4
    VDA = VB + 2 * NT
    VDB = VDA + 2
    VC = VDB + 2
    VT = VC + 1
    NV = VT + 8
    assert NV <= 256, NV

    k.e(f"s_cmp_ge_u32 s2, {ntiles}")
    k.e(f"s_cbranch_scc1 {name}_end")
    k.e("s_load_dwordx16 s[40:55], s[0:1], 0")
    k.e("s_load_dwordx8 s[56:63], s[0:1], 64")
    k.e("s_load_dwordx2 s[64:65], s[0:1], 96")
    k.e(f"v_and_b32 v{VT}, 63, v0")
    k.e(f"v_lshrrev_b32 v{VT+1}, 6, v0")
    k.e("s_nop 1")
    k.e(f"v_readfirstlane_b32 s3, v{VT+1}")
    k.e("s_waitcnt lgkmcnt(0)")
    if pre:
        pre(k)
    decode(k)
    srd(k, 4, 20, 21)
    srd(k, 8, 22, 23)
    srd(k, 12, 24, 25)
    l = VT
    import math
    lgWN = int(math.log2(WN))
    k.e(f"s_lshr_b32 s30, s3, {lgWN}")
    k.e(f"s_and_b32 s31, s3, {WN-1}")
    t0, t1, t2, t3 = VT + 2, VT + 3, VT + 4, VT + 5
    k.e(f"v_and_b32 v{t0}, 15, v{l}")
    k.e(f"v_lshrrev_b32 v{t1}, 4, v{l}")
    k.e(f"v_lshrrev_b32 v{t2}, 1, v{t0}")
    k.e(f"s_mul_i32 s32, s30, {WTM*128}")
    for kc in range(2):
        k.e(f"v_or_b32 v{t3}, {4*kc}, v{t1}")
        k.e(f"v_xor_b32 v{t3}, v{t3}, v{t2}")
        k.e(f"v_lshlrev_b32 v{t3}, 4, v{t3}")
        k.e(f"v_lshl_add_u32 v{t3}, v{t0}, 7, v{t3}")
        k.e(f"v_add_u32 v{VA+kc}, s32, v{t3}")
        k.e(f"v_add_u32 v{VA+2+kc}, {STG}, v{VA+kc}")
    k.e(f"v_lshrrev_b32 v{t2}, 2, v{t0}")
    k.e(f"v_and_b32 v{t3}, 1, v{t1}")
    k.e(f"v_lshl_or_b32 v{t3}, v{t3}, 2, v{t2}")
    k.e(f"v_lshlrev_b32 v{t3}, 1, v{t3}")
    k.e(f"v_lshl_add_u32 v{t2}, v{t1}, 3, v{t2}")
    k.e(f"s_mov_b32 s33, {BN*2}")
    k.e(f"v_mul_lo_u32 v{t2}, v{t2}, s33")
    k.e(f"v_and_b32 v{t0}, 3, v{l}")
    k.e(f"v_and_b32 v{t1}, 1, v{t0}")
    k.e(f"v_lshl_add_u32 v{t2}, v{t1}, 3, v{t2}")
    k.e(f"v_add_u32 v{t2}, {A_BYTES}, v{t2}")
    k.e(f"v_lshrrev_b32 v{t0}, 1, v{t0}")
    k.e(f"s_mul_i32 s32, s31, {NT*2}")
    for nt in range(NT):
        k.e(f"s_add_u32 s33, s32, {2*nt}")
        k.e(f"v_or_b32 v{t1}, s33, v{t0}")
        k.e(f"v_xor_b32 v{t1}, v{t1}, v{t3}")
        k.e(f"v_lshl_add_u32 v{VB+nt}, v{t1}, 4, v{t2}")
        k.e(f"v_add_u32 v{VB+NT+nt}, {STG}, v{VB+nt}")
    k.e(f"v_lshrrev_b32 v{t0}, 3, v{l}")
    k.e(f"v_mul_lo_u32 v{t0}, v{t0}, s26")
    k.e(f"v_and_b32 v{t1}, 7, v{l}")
    k.e(f"v_lshrrev_b32 v{t2}, 4, v{l}")
    for par in range(2):
        k.e(f"v_or_b32 v{t3}, {4*par}, v{t2}")
        k.e(f"v_xor_b32 v{t3}, v{t3}, v{t1}")
        k.e(f"v_lshl_add_u32 v{VDA+par}, v{t3}, 4, v{t0}")
    CPR = BN * 2 // 16
    lgCPR = int(math.log2(CPR))
    assert nB == 4
    k.e(f"v_lshrrev_b32 v{t0}, {lgCPR}, v{l}")
    k.e(f"v_and_b32 v{t1}, {CPR-1}, v{l}")
    k.e(f"v_mul_lo_u32 v{t2}, v{t0}, s27")
    for par in range(2):
        if RPI == 2:
            k.e(f"s_and_b32 s33, s3, 1")
            k.e(f"s_lshl_b32 s33, s33, 2")
            k.e(f"s_or_b32 s33, s33, {2*par}")
            k.e(f"v_or_b32 v{t3}, s33, v{t0}")
        else:
            k.e(f"v_or_b32 v{t3}, {4*par}, v{t0}")
        k.e(f"v_lshlrev_b32 v{t3}, 1, v{t3}")
        k.e(f"v_xor_b32 v{t3}, v{t3}, v{t1}")
        k.e(f"v_lshl_add_u32 v{VDB+par}, v{t3}, 4, v{t2}")
    k.e(f"v_and_b32 v{t0}, 15, v{l}")
    k.e(f"s_mul_i32 s32, s30, {WTM}")
    k.e(f"v_add_u32 v{t0}, s32, v{t0}")
    k.e(f"v_mul_lo_u32 v{t0}, v{t0}, s28")
    k.e(f"v_lshrrev_b32 v{t1}, 4, v{l}")
    k.e(f"s_mul_i32 s32, s31, {WTN*2}")
    k.e(f"v_lshl_add_u32 v{t0}, v{t1}, 3, v{t0}")
    k.e(f"v_add_u32 v{VC}, s32, v{t0}")
    k.e(f"s_lshl_b32 s35, s26, 3")
    k.e(f"s_mul_i32 s34, s3, {nA}")
    k.e(f"s_mul_i32 s34, s34, s35")
    k.e(f"s_mul_i32 s37, s27, {RPI}")
    k.e(f"s_mul_i32 s36, s3, {nB}")
    k.e(f"s_mul_i32 s36, s36, s37")
    k.e(f"s_lshl_b32 s38, s27, 6")
    k.e(f"s_mul_i32 s66, s3, {nA*1024}")
    k.e(f"s_mul_i32 s67, s3, {nB*1024}")
    k.e(f"s_add_u32 s67, s67, {A_BYTES}")
    for i in range(MT * NT * 4):
        k.e(f"v_mov_b32 v{ACC+i}, 0")

    def issue_dma(stage):
        for ii in range(nA):
            k.e(f"s_add_u32 m0, s66, {stage*STG + ii*1024}")
            if ii == 0:
                k.e("s_mov_b32 s39, s34")
            else:
                k.e("s_add_u32 s39, s39, s35")
            k.e(f"buffer_load_dwordx4 v{VDA + (ii & 1)}, s[4:7], s39 offen lds")
        for ii in range(nB):
            par = (ii & 1) if RPI == 2 else ((ii >> 1) & 1)
            k.e(f"s_add_u32 m0, s67, {stage*STG + ii*1024}")
            if ii == 0:
                k.e("s_mov_b32 s39, s36")
            else:
                k.e("s_add_u32 s39, s39, s37")
            k.e(f"buffer_load_dwordx4 v{VDB + par}, s[8:11], s39 offen lds")
        k.e("s_add_u32 s34, s34, 128")
        k.e("s_add_u32 s36, s36, s38")

    def compute(stage):
        for ks in range(2):
            for mt in range(MT):
                k.e(f"ds_read_b128 v[{XF+4*mt}:{XF+4*mt+3}], v{VA+2*stage+ks} offset:{mt*2048}")
            for nt in range(NT):
                for u in range(2):
                    k.e(f"ds_read_b64_tr_b16 v[{WF+4*nt+2*u}:{WF+4*nt+2*u+1}], v{VB+NT*stage+nt} "
                        f"offset:{(32*ks+4*u)*BN*2}")
            k.e("s_waitcnt lgkmcnt(0)")
            for mt in range(MT):
                for nt in range(NT):
                    a = ACC + (mt * NT + nt) * 4
                    k.e(f"v_mfma_f32_16x16x32_bf16 v[{a}:{a+3}], v[{WF+4*nt}:{WF+4*nt+3}], "
                        f"v[{XF+4*mt}:{XF+4*mt+3}], v[{a}:{a+3}]")

    k.e("s_nop 4")
    issue_dma(0)
    k.e("s_mov_b32 s70, 0")
    loop = k.newlabel("loop")
    k.label(loop)
    for stage in range(2):
        k.e("s_waitcnt vmcnt(0)")
        k.e("s_barrier")
        skip = k.newlabel("skip")
        k.e(f"s_add_u32 s71, s70, {stage+1}")
        k.e("s_cmp_ge_u32 s71, s29")
        k.e(f"s_cbranch_scc1 {skip}")
        issue_dma(1 - stage)
        k.label(skip)
        compute(stage)
    k.e("s_add_u32 s70, s70, 2")
    k.e("s_cmp_lt_u32 s70, s29")
    k.e(f"s_cbranch_scc1 {loop}")
    k.e("s_nop 7")
    k.e("s_nop 7")
    k.e("s_lshl_b32 s35, s28, 4")
    k.e("s_mov_b32 s39, 0")
    for mt in range(MT):
        for nt in range(NT):
            a = ACC + (mt * NT + nt) * 4
            k.e(f"v_cvt_pk_bf16_f32 v{a}, v{a}, v{a+1}")
            k.e(f"v_cvt_pk_bf16_f32 v{a+1}, v{a+2}, v{a+3}")
            k.e(f"buffer_store_dwordx2 v[{a}:{a+1}], v{VC}, s[12:15], s39 offen offset:{nt*32}")
        k.e("s_add_u32 s39, s39, s35")
    k.label(f"{name}_end")
    return k, NV


def add64(k, dlo, dhi, alo, ahi, b):
    k.e(f"s_add_u32 s{dlo}, s{alo}, s{b}")
    k.e(f"s_addc_u32 s{dhi}, s{ahi}, 0")


def decode_g1(k):
    lb = k.newlabel("g1b")
    ld = k.newlabel("g1d")
    k.e("s_cmp_ge_u32 s2, 96")
    k.e(f"s_cbranch_scc1 {lb}")
    k.e("s_mul_hi_u32 s72, s2, 0x15555556")
    k.e("s_mul_i32 s73, s72, 12")
    k.e("s_sub_u32 s73, s2, s73")
    k.e("s_lshl_b32 s74, s72, 19")
    add64(k, 20, 21, 40, 41, 74)
    k.e("s_lshl_b32 s74, s73, 9")
    add64(k, 22, 23, 42, 43, 74)
    k.e(f"s_mul_i32 s74, s72, {256*3072*2}")
    k.e("s_lshl_b32 s75, s73, 9")
    k.e("s_add_u32 s74, s74, s75")
    k.e(f"s_add_u32 s74, s74, {QKVA_OFF}")
    add64(k, 24, 25, 64, 65, 74)
    k.e("s_mov_b32 s26, 2048")
    k.e("s_mov_b32 s27, 6144")
    k.e("s_mov_b32 s28, 6144")
    k.e("s_mov_b32 s29, 16")
    k.e(f"s_branch {ld}")
    k.label(lb)
    k.e("s_sub_u32 s76, s2, 96")
    k.e("s_mul_hi_u32 s72, s76, 0x5555556")
    k.e("s_mul_i32 s73, s72, 48")
    k.e("s_sub_u32 s73, s76, s73")
    k.e("s_lshl_b32 s74, s72, 19")
    add64(k, 20, 21, 46, 47, 74)
    k.e("s_lshr_b32 s75, s73, 4")
    k.e("s_and_b32 s77, s73, 15")
    k.e("s_mov_b32 s22, s50")
    k.e("s_mov_b32 s23, s51")
    k.e("s_cmp_eq_u32 s75, 1")
    k.e("s_cselect_b32 s22, s52, s22")
    k.e("s_cselect_b32 s23, s53, s23")
    k.e("s_cmp_eq_u32 s75, 2")
    k.e("s_cselect_b32 s22, s54, s22")
    k.e("s_cselect_b32 s23, s55, s23")
    k.e("s_lshl_b32 s74, s77, 9")
    add64(k, 22, 23, 22, 23, 74)
    k.e(f"s_mul_i32 s74, s72, {256*12288*2}")
    k.e("s_lshl_b32 s75, s73, 9")
    k.e("s_add_u32 s74, s74, s75")
    k.e(f"s_add_u32 s74, s74, {QKVB_OFF}")
    add64(k, 24, 25, 64, 65, 74)
    k.e("s_mov_b32 s26, 2048")
    k.e("s_mov_b32 s27, 8192")
    k.e("s_mov_b32 s28, 24576")
    k.e("s_mov_b32 s29, 16")
    k.label(ld)


XB_OFF = HAND_OFF
PART_OFF = XB_OFF + 2 * 32 * 12288
MEMX_OFF = PART_OFF + 2 * 32 * 256 * 256
HAND_END = MEMX_OFF + 2 * 32768
POLL_MAX = 400000
import os
REC_STOP = int(os.environ.get('REC_STOP', '63'))


def rec_kernel(name):
    k = K(name)
    WQ = 4
    WO = 100
    MF = 132
    ACC = 196
    PX = 208
    V = 224
    vL, vM, vG = V, V + 1, V + 2
    vT0, vT1, vT2, vT3 = V + 3, V + 4, V + 5, V + 6
    vMemOff = V + 7
    vXBst = V + 8
    vXBld = V + 9
    vLdsXw = V + 10
    vKrd = V + 11
    vQrd = V + 12
    vVrd = V + 13
    vOwr = V + 14
    vOrd = V + 15
    vPst = V + 16
    vPld = V + 17
    vMXst = V + 18
    vKVst = V + 19
    vRedW = V + 20
    vPXg = V + 21
    vPXl = V + 22
    NV = V + 24
    RS = 272
    KL = 0
    VL = KL + 48 * RS
    QL = VL + 48 * RS
    OL = QL + 16 * RS
    RED = OL + 16 * RS
    LDS_BYTES = RED + 12288
    end = f"{name}_end"
    k.e("s_cmp_ge_u32 s2, 256")
    k.e(f"s_cbranch_scc1 {end}")
    k.e("s_load_dwordx16 s[40:55], s[0:1], 0")
    k.e("s_load_dwordx8 s[56:63], s[0:1], 64")
    k.e("s_load_dwordx2 s[64:65], s[0:1], 96")
    k.e(f"v_and_b32 v{vL}, 63, v0")
    k.e(f"v_lshrrev_b32 v{vT0}, 6, v0")
    k.e("s_nop 1")
    k.e(f"v_readfirstlane_b32 s3, v{vT0}")
    k.e(f"v_and_b32 v{vM}, 15, v{vL}")
    k.e(f"v_lshrrev_b32 v{vG}, 4, v{vL}")
    k.e("s_lshr_b32 s20, s2, 3")
    k.e("s_and_b32 s21, s2, 7")
    k.e("s_waitcnt lgkmcnt(0)")
    srd(k, 4, 64, 65, "0x10000000")
    k.e("s_lshl_b32 s24, s20, 7")
    k.e("s_lshl_b32 s25, s21, 4")
    k.e("s_add_u32 s24, s24, s25")
    k.e(f"v_add_u32 v{vT0}, s24, v{vM}")
    k.e(f"v_lshlrev_b32 v{vT0}, 1, v{vT0}")
    k.e(f"v_lshl_add_u32 v{vT0}, v{vG}, 16, v{vT0}")
    k.e("s_lshl_b32 s26, s3, 21")
    for t in range(3):
        srd(k, 8, 50 + 2 * t, 51 + 2 * t, "0x800000")
        k.e("s_mov_b32 s27, s26")
        for ks in range(8):
            for i in range(8):
                k.e(f"buffer_load_ushort v{MF+8*(ks%4)+i}, v{vT0}, s[8:11], s27 offen")
                k.e("s_add_u32 s27, s27, 8192")
            k.e("s_add_u32 s27, s27, 196608")
            if ks % 4 == 3:
                k.e("s_waitcnt vmcnt(0)")
                for k2 in range(4):
                    for i2 in range(4):
                        r = WQ + ((ks - 3 + k2) * 3 + t) * 4 + i2
                        k.e(f"v_lshl_or_b32 v{r}, v{MF+8*k2+2*i2+1}, 16, v{MF+8*k2+2*i2}")
    srd(k, 8, 56, 57, "0x800000")
    k.e("s_lshl_b32 s24, s21, 7")
    k.e("s_lshl_b32 s25, s3, 5")
    k.e("s_add_u32 s24, s24, s25")
    k.e(f"v_add_u32 v{vT0}, s24, v{vM}")
    k.e(f"v_lshlrev_b32 v{vT0}, 1, v{vT0}")
    k.e(f"v_lshl_add_u32 v{vT0}, v{vG}, 14, v{vT0}")
    k.e("s_lshl_b32 s26, s20, 18")
    for u in range(2):
        k.e("s_mov_b32 s27, s26")
        for ks in range(4):
            for i in range(8):
                k.e(f"buffer_load_ushort v{MF+8*ks+i}, v{vT0}, s[8:11], s27 offen offset:{32*u}")
                k.e("s_add_u32 s27, s27, 2048")
            k.e("s_add_u32 s27, s27, 49152")
        k.e("s_waitcnt vmcnt(0)")
        for ks in range(4):
            for i2 in range(4):
                r = WO + (u * 4 + ks) * 4 + i2
                k.e(f"v_lshl_or_b32 v{r}, v{MF+8*ks+2*i2+1}, 16, v{MF+8*ks+2*i2}")
    k.e(f"v_and_b32 v{vT0}, 7, v{vL}")
    k.e(f"v_lshl_add_u32 v{vT1}, v{vG}, 3, v{vT0}")
    k.e(f"v_lshlrev_b32 v{vT1}, 5, v{vT1}")
    k.e("s_lshl_b32 s24, s3, 13")
    k.e(f"v_add_u32 v{vMemOff}, s24, v{vT1}")
    k.e("s_mul_i32 s24, s20, 3")
    k.e("s_add_u32 s24, s24, s3")
    k.e("s_lshl_b32 s24, s24, 12")
    k.e("s_lshl_b32 s25, s21, 6")
    k.e("s_add_u32 s24, s24, s25")
    k.e(f"v_lshlrev_b32 v{vT1}, 9, v{vT0}")
    k.e(f"v_lshl_add_u32 v{vT1}, v{vG}, 4, v{vT1}")
    k.e(f"v_add_u32 v{vXBst}, s24, v{vT1}")
    k.e("s_mul_i32 s24, s20, 12288")
    k.e("s_mul_i32 s25, s3, 3072")
    k.e("s_add_u32 s24, s24, s25")
    k.e(f"v_lshlrev_b32 v{vT1}, 4, v{vL}")
    k.e(f"v_add_u32 v{vXBld}, s24, v{vT1}")
    k.e("s_lshl_b32 s24, s20, 8")
    k.e("s_lshl_b32 s25, s21, 5")
    k.e("s_add_u32 s24, s24, s25")
    k.e("s_sub_u32 s25, s3, 1")
    k.e("s_lshl_b32 s25, s25, 13")
    k.e("s_add_u32 s24, s24, s25")
    k.e(f"v_lshlrev_b32 v{vT1}, 14, v{vT0}")
    k.e(f"v_lshl_add_u32 v{vT1}, v{vG}, 3, v{vT1}")
    k.e(f"v_add_u32 v{vKVst}, s24, v{vT1}")
    k.e("s_mul_i32 s24, s3, 3072")
    k.e(f"v_lshlrev_b32 v{vT1}, 4, v{vL}")
    k.e(f"v_add_u32 v{vT1}, s24, v{vT1}")
    k.e(f"v_add_u32 v{vRedW}, {RED}, v{vT1}")
    k.e(f"v_lshrrev_b32 v{vT1}, 5, v{vL}")
    k.e(f"v_mul_u32_u24 v{vT1}, {RS}, v{vT1}")
    k.e(f"v_and_b32 v{vT2}, 31, v{vL}")
    k.e(f"v_lshl_add_u32 v{vLdsXw}, v{vT2}, 3, v{vT1}")
    k.e(f"v_mul_u32_u24 v{vT1}, {RS}, v{vM}")
    k.e(f"v_lshl_add_u32 v{vKrd}, v{vG}, 4, v{vT1}")
    k.e(f"v_lshrrev_b32 v{vT1}, 2, v{vM}")
    k.e(f"v_lshl_add_u32 v{vT1}, v{vG}, 2, v{vT1}")
    k.e(f"v_mul_u32_u24 v{vT1}, {RS}, v{vT1}")
    k.e(f"v_and_b32 v{vT2}, 3, v{vL}")
    k.e(f"v_lshl_add_u32 v{vT1}, v{vT2}, 3, v{vT1}")
    k.e("s_lshl_b32 s24, s3, 6")
    k.e(f"v_add_u32 v{vT1}, s24, v{vT1}")
    k.e(f"v_add_u32 v{vVrd}, {VL}, v{vT1}")
    k.e(f"v_mul_u32_u24 v{vT1}, {RS}, v{vM}")
    k.e(f"v_lshl_add_u32 v{vT1}, v{vG}, 3, v{vT1}")
    k.e(f"v_add_u32 v{vT1}, s24, v{vT1}")
    k.e(f"v_add_u32 v{vOwr}, {OL}, v{vT1}")
    k.e("s_lshl_b32 s24, s20, 16")
    k.e("s_lshl_b32 s25, s21, 13")
    k.e("s_add_u32 s24, s24, s25")
    k.e("s_lshl_b32 s25, s3, 11")
    k.e("s_add_u32 s24, s24, s25")
    k.e(f"v_lshl_add_u32 v{vT1}, v{vG}, 3, v{vT0}")
    k.e(f"v_lshlrev_b32 v{vT1}, 5, v{vT1}")
    k.e(f"v_add_u32 v{vPst}, s24, v{vT1}")
    k.e("s_lshl_b32 s24, s2, 8")
    k.e(f"v_lshlrev_b32 v{vT1}, 16, v{vG}")
    k.e(f"v_lshl_add_u32 v{vT1}, v{vM}, 4, v{vT1}")
    k.e(f"v_add_u32 v{vPld}, s24, v{vT1}")
    k.e("s_lshr_b32 s24, s2, 1")
    k.e("s_lshl_b32 s24, s24, 8")
    k.e("s_and_b32 s25, s2, 1")
    k.e("s_lshl_b32 s25, s25, 4")
    k.e("s_add_u32 s24, s24, s25")
    k.e(f"v_lshrrev_b32 v{vT1}, 1, v{vM}")
    k.e(f"v_lshlrev_b32 v{vT1}, 5, v{vT1}")
    k.e(f"v_and_b32 v{vT2}, 1, v{vM}")
    k.e(f"v_lshl_add_u32 v{vT1}, v{vT2}, 3, v{vT1}")
    k.e(f"v_add_u32 v{vMXst}, s24, v{vT1}")
    k.e(f"v_lshrrev_b32 v{vT1}, 3, v0")
    k.e("s_mov_b32 s24, 24576")
    k.e(f"v_mul_lo_u32 v{vT2}, v{vT1}, s24")
    k.e(f"v_and_b32 v{vT3}, 7, v0")
    k.e(f"v_lshl_add_u32 v{vT2}, v{vT3}, 4, v{vT2}")
    k.e("s_lshl_b32 s24, s20, 8")
    k.e(f"s_add_u32 s24, s24, {QKVB_OFF + 8192}")
    k.e(f"v_add_u32 v{vPXg}, s24, v{vT2}")
    k.e(f"v_mul_u32_u24 v{vT2}, {RS}, v{vT1}")
    k.e(f"v_lshl_add_u32 v{vPXl}, v{vT3}, 4, v{vT2}")
    k.e(f"v_mov_b32 v{MF}, 0")
    k.e(f"v_mov_b32 v{MF+1}, 0")
    k.e(f"v_mov_b32 v{MF+2}, 0")
    k.e(f"v_mov_b32 v{MF+3}, 0")
    k.e(f"v_lshlrev_b32 v{vT1}, 4, v0")
    for i in range((RED + 4095) // 4096):
        k.e(f"ds_write_b128 v{vT1}, v[{MF}:{MF+3}] offset:{i*4096}")
    k.e("s_waitcnt lgkmcnt(0)")
    k.e("s_barrier")

    def prefetch_x(sreg_seg):
        k.e(f"s_mul_i32 s28, s{sreg_seg}, {32*24576}")
        for c in range(2):
            k.e(f"buffer_load_dwordx4 v[{PX+4*c}:{PX+4*c+3}], v{vPXg}, s[4:7], s28 offen offset:{128*c}")
        k.e("s_add_u32 s28, s28, 8192")
        for c in range(2):
            k.e(f"buffer_load_dwordx4 v[{PX+8+4*c}:{PX+8+4*c+3}], v{vPXg}, s[4:7], s28 offen offset:{128*c}")

    k.e("s_mov_b32 s22, 0")
    prefetch_x(22)
    step = k.newlabel("step")
    k.label(step)
    k.e("s_add_u32 s23, s22, 1")
    k.e("s_and_b32 s29, s22, 1")
    have = k.newlabel("havemem")
    k.e("s_cmp_lg_u32 s22, 0")
    k.e(f"s_cbranch_scc1 {name}_poll_mem")
    srd(k, 8, 48, 49, "0x4000")
    k.e(f"v_and_b32 v{vT0}, 7, v{vL}")
    k.e(f"v_lshlrev_b32 v{vT0}, 11, v{vT0}")
    k.e(f"v_lshl_add_u32 v{vT0}, v{vG}, 4, v{vT0}")
    k.e("s_lshl_b32 s24, s3, 9")
    for ks in range(8):
        k.e(f"buffer_load_dwordx4 v[{MF+4*ks}:{MF+4*ks+3}], v{vT0}, s[8:11], s24 offen offset:{64*ks}")
    k.e("s_waitcnt vmcnt(0)")
    k.e(f"s_branch {have}")
    k.label(f"{name}_poll_mem")
    k.e(f"s_lshl_b32 s24, s29, 15")
    k.e(f"s_add_u32 s24, s24, {MEMX_OFF}")
    k.e(f"s_mov_b32 s30, 0")
    pl = k.newlabel("pollmem")
    k.label(pl)
    k.e("s_add_u32 s25, s24, 4096")
    for ks in range(8):
        for hh in range(2):
            k.e(f"buffer_load_dwordx4 v[{MF+8*ks+4*hh}:{MF+8*ks+4*hh+3}], v{vMemOff}, s[4:7], s{24 if ks < 4 else 25} offen offset:{1024*(ks%4)+16*hh} sc0 sc1")
    k.e("s_waitcnt vmcnt(0)")
    k.e(f"v_xor_b32 v{vT0}, s22, v{MF+1}")
    k.e(f"v_xor_b32 v{vT1}, s22, v{MF+3}")
    for q in range(1, 16):
        k.e(f"v_xor_b32 v{vT2}, s22, v{MF+4*q+1}")
        k.e(f"v_xor_b32 v{vT3}, s22, v{MF+4*q+3}")
        k.e(f"v_or3_b32 v{vT0}, v{vT0}, v{vT2}, v{vT3}")
    k.e(f"v_or_b32 v{vT0}, v{vT0}, v{vT1}")
    k.e(f"v_cmp_ne_u32 vcc, 0, v{vT0}")
    k.e("s_add_u32 s30, s30, 1")
    k.e(f"s_cmp_ge_u32 s30, {POLL_MAX}")
    k.e(f"s_cbranch_scc1 {end}")
    k.e(f"s_cbranch_vccnz {pl}")
    for ks in range(8):
        b = MF + 8 * ks
        d = MF + 4 * ks
        k.e(f"v_mov_b32 v{d}, v{b}")
        k.e(f"v_mov_b32 v{d+1}, v{b+2}")
        k.e(f"v_mov_b32 v{d+2}, v{b+4}")
        k.e(f"v_mov_b32 v{d+3}, v{b+6}")
    k.label(have)
    for t in range(3):
        for i in range(4):
            k.e(f"v_mov_b32 v{ACC+4*t+i}, 0")
    k.e("s_nop 1")
    for ks in range(8):
        for t in range(3):
            w = WQ + (ks * 3 + t) * 4
            k.e(f"v_mfma_f32_16x16x32_bf16 v[{ACC+4*t}:{ACC+4*t+3}], v[{w}:{w+3}], v[{MF+4*ks}:{MF+4*ks+3}], v[{ACC+4*t}:{ACC+4*t+3}]")
    k.e("s_nop 7")
    k.e("s_nop 3")
    for t in range(3):
        k.e(f"ds_write_b128 v{vRedW}, v[{ACC+4*t}:{ACC+4*t+3}] offset:{1024*t}")
    k.e("s_waitcnt lgkmcnt(0)")
    k.e("s_barrier")
    nopub = k.newlabel("nopub")
    k.e("s_cmp_ge_u32 s3, 3")
    k.e(f"s_cbranch_scc1 {nopub}")
    k.e("s_lshl_b32 s24, s3, 10")
    k.e(f"v_lshlrev_b32 v{vT0}, 4, v{vL}")
    k.e(f"v_add_u32 v{vT0}, s24, v{vT0}")
    for w in range(4):
        k.e(f"ds_read_b128 v[{MF+4*w}:{MF+4*w+3}], v{vT0} offset:{RED + 3072*w}")
    k.e("s_waitcnt lgkmcnt(0)")
    for i in range(4):
        k.e(f"v_add_f32 v{MF+i}, v{MF+i}, v{MF+4+i}")
        k.e(f"v_add_f32 v{MF+8+i}, v{MF+8+i}, v{MF+12+i}")
    for i in range(4):
        k.e(f"v_add_f32 v{MF+i}, v{MF+i}, v{MF+8+i}")
    k.e(f"v_cvt_pk_bf16_f32 v{MF+16}, v{MF}, v{MF+1}")
    k.e(f"v_cvt_pk_bf16_f32 v{MF+18}, v{MF+2}, v{MF+3}")
    k.e(f"v_mov_b32 v{MF+17}, s23")
    k.e(f"v_mov_b32 v{MF+19}, s23")
    k.e(f"s_mul_i32 s24, s29, {32*12288}")
    k.e(f"s_add_u32 s24, s24, {XB_OFF}")
    k.e(f"buffer_store_dwordx4 v[{MF+16}:{MF+19}], v{vXBst}, s[4:7], s24 offen sc0 sc1")
    nokv = k.newlabel("nokv")
    k.e("s_cmp_eq_u32 s3, 0")
    k.e(f"s_cbranch_scc1 {nokv}")
    k.e(f"v_mov_b32 v{MF+17}, v{MF+18}")
    k.e(f"s_lshl_b32 s24, s22, 17")
    k.e(f"s_add_u32 s24, s24, {MEMKV_OFF}")
    k.e(f"buffer_store_dwordx2 v[{MF+16}:{MF+17}], v{vKVst}, s[4:7], s24 offen")
    k.label(nokv)
    k.label(nopub)
    k.e(f"s_cmp_eq_u32 s22, {REC_STOP}")
    k.e(f"s_cbranch_scc1 {end}")
    k.e("s_waitcnt vmcnt(0)")
    for c in range(2):
        k.e(f"ds_write_b128 v{vPXl}, v[{PX+4*c}:{PX+4*c+3}] offset:{KL+128*c}")
        k.e(f"ds_write_b128 v{vPXl}, v[{PX+8+4*c}:{PX+8+4*c+3}] offset:{VL+128*c}")
    k.e(f"s_mul_i32 s24, s29, {32*12288}")
    k.e(f"s_add_u32 s24, s24, {XB_OFF}")
    k.e("s_mov_b32 s30, 0")
    pl = k.newlabel("pollx")
    k.label(pl)
    for qq in range(3):
        k.e(f"buffer_load_dwordx4 v[{MF+4*qq}:{MF+4*qq+3}], v{vXBld}, s[4:7], s24 offen offset:{1024*qq} sc0 sc1")
    k.e("s_waitcnt vmcnt(0)")
    k.e(f"v_xor_b32 v{vT0}, s23, v{MF+1}")
    k.e(f"v_xor_b32 v{vT1}, s23, v{MF+3}")
    for qq in range(1, 3):
        k.e(f"v_xor_b32 v{vT2}, s23, v{MF+4*qq+1}")
        k.e(f"v_xor_b32 v{vT3}, s23, v{MF+4*qq+3}")
        k.e(f"v_or3_b32 v{vT0}, v{vT0}, v{vT2}, v{vT3}")
    k.e(f"v_or_b32 v{vT0}, v{vT0}, v{vT1}")
    k.e(f"v_cmp_ne_u32 vcc, 0, v{vT0}")
    k.e("s_add_u32 s30, s30, 1")
    k.e(f"s_cmp_ge_u32 s30, {POLL_MAX}")
    k.e(f"s_cbranch_scc1 {end}")
    k.e(f"s_cbranch_vccnz {pl}")
    for qq in range(3):
        k.e(f"v_mov_b32 v{MF+4*qq+1}, v{MF+4*qq+2}")
    for qq in range(3):
        k.e(f"s_mul_i32 s24, s3, 3")
        k.e(f"s_add_u32 s24, s24, {qq}")
        k.e("s_lshr_b32 s25, s24, 2")
        k.e("s_and_b32 s24, s24, 3")
        k.e(f"s_mul_i32 s24, s24, {2*RS}")
        k.e(f"s_mov_b32 s26, {QL}")
        k.e("s_cmp_eq_u32 s25, 1")
        k.e(f"s_cselect_b32 s26, {KL+32*RS}, s26")
        k.e("s_cmp_eq_u32 s25, 2")
        k.e(f"s_cselect_b32 s26, {VL+32*RS}, s26")
        k.e("s_add_u32 s24, s24, s26")
        k.e(f"v_add_u32 v{vT0}, s24, v{vLdsXw}")
        k.e(f"ds_write_b64 v{vT0}, v[{MF+4*qq}:{MF+4*qq+1}]")
    k.e("s_waitcnt lgkmcnt(0)")
    k.e("s_barrier")
    k.e("s_add_u32 s31, s22, 1")
    prefetch_x(31)
    SC = MF
    KF = MF + 12
    QF = MF + 28
    for ks in range(4):
        k.e(f"ds_read_b128 v[{QF+4*ks}:{QF+4*ks+3}], v{vKrd} offset:{QL+64*ks}")
    for T in range(3):
        for i in range(4):
            k.e(f"v_mov_b32 v{SC+4*T+i}, 0")
    for T in range(3):
        for ks in range(4):
            k.e(f"ds_read_b128 v[{KF+4*ks}:{KF+4*ks+3}], v{vKrd} offset:{KL+16*T*RS+64*ks}")
        k.e("s_waitcnt lgkmcnt(0)")
        for ks in range(4):
            k.e(f"v_mfma_f32_16x16x32_bf16 v[{SC+4*T}:{SC+4*T+3}], v[{KF+4*ks}:{KF+4*ks+3}], v[{QF+4*ks}:{QF+4*ks+3}], v[{SC+4*T}:{SC+4*T+3}]")
    k.e("s_nop 7")
    k.e("s_nop 3")
    k.e("s_mov_b32 s24, 0x3db504f3")
    for q in range(12):
        k.e(f"v_cvt_pk_bf16_f32 v{SC+q}, v{SC+q}, v{SC+q}")
        k.e(f"v_lshlrev_b32 v{SC+q}, 16, v{SC+q}")
        k.e(f"v_mul_f32 v{SC+q}, s24, v{SC+q}")
        k.e(f"v_cvt_pk_bf16_f32 v{SC+q}, v{SC+q}, v{SC+q}")
        k.e(f"v_lshlrev_b32 v{SC+q}, 16, v{SC+q}")
    k.e(f"v_cmp_le_u32 vcc, 2, v{vG}")
    k.e("s_mov_b32 s24, 0xf149f2ca")
    for i in range(4):
        k.e(f"v_mov_b32 v{vT0}, s24")
        k.e(f"v_cndmask_b32 v{SC+8+i}, v{SC+8+i}, v{vT0}, vcc")
    k.e(f"v_max3_f32 v{vT0}, v{SC}, v{SC+1}, v{SC+2}")
    for q in range(3, 12, 2):
        if q + 1 < 12:
            k.e(f"v_max3_f32 v{vT0}, v{vT0}, v{SC+q}, v{SC+q+1}")
        else:
            k.e(f"v_max_f32 v{vT0}, v{vT0}, v{SC+q}")
    for x in (16, 32):
        k.e(f"v_xor_b32 v{vT1}, {x}, v{vL}")
        k.e(f"v_lshlrev_b32 v{vT1}, 2, v{vT1}")
        k.e(f"ds_bpermute_b32 v{vT2}, v{vT1}, v{vT0}")
        k.e("s_waitcnt lgkmcnt(0)")
        k.e(f"v_max_f32 v{vT0}, v{vT0}, v{vT2}")
    k.e("s_mov_b32 s24, 0x3fb8aa3b")
    for q in range(12):
        k.e(f"v_sub_f32 v{SC+q}, v{SC+q}, v{vT0}")
        k.e(f"v_mul_f32 v{SC+q}, s24, v{SC+q}")
        k.e(f"v_exp_f32 v{SC+q}, v{SC+q}")
    k.e("s_nop 0")
    k.e(f"v_add_f32 v{vT0}, v{SC}, v{SC+1}")
    for q in range(2, 12):
        k.e(f"v_add_f32 v{vT0}, v{vT0}, v{SC+q}")
    for x in (16, 32):
        k.e(f"v_xor_b32 v{vT1}, {x}, v{vL}")
        k.e(f"v_lshlrev_b32 v{vT1}, 2, v{vT1}")
        k.e(f"ds_bpermute_b32 v{vT2}, v{vT1}, v{vT0}")
        k.e("s_waitcnt lgkmcnt(0)")
        k.e(f"v_add_f32 v{vT0}, v{vT0}, v{vT2}")
    k.e(f"v_rcp_f32 v{vT0}, v{vT0}")
    k.e("s_nop 0")
    for q in range(12):
        k.e(f"v_mul_f32 v{SC+q}, v{SC+q}, v{vT0}")
    PF = KF
    k.e(f"v_cvt_pk_bf16_f32 v{PF}, v{SC}, v{SC+1}")
    k.e(f"v_cvt_pk_bf16_f32 v{PF+1}, v{SC+2}, v{SC+3}")
    k.e(f"v_cvt_pk_bf16_f32 v{PF+2}, v{SC+4}, v{SC+5}")
    k.e(f"v_cvt_pk_bf16_f32 v{PF+3}, v{SC+6}, v{SC+7}")
    k.e(f"v_cvt_pk_bf16_f32 v{PF+4}, v{SC+8}, v{SC+9}")
    k.e(f"v_cvt_pk_bf16_f32 v{PF+5}, v{SC+10}, v{SC+11}")
    k.e(f"v_mov_b32 v{PF+6}, 0")
    k.e(f"v_mov_b32 v{PF+7}, 0")
    VF = QF
    OACC = SC
    for du in range(2):
        for i in range(4):
            k.e(f"v_mov_b32 v{OACC+4*du+i}, 0")
    for du in range(2):
        k.e(f"ds_read_b64_tr_b16 v[{VF}:{VF+1}], v{vVrd} offset:{32*du}")
        k.e(f"ds_read_b64_tr_b16 v[{VF+2}:{VF+3}], v{vVrd} offset:{32*du+16*RS}")
        k.e(f"ds_read_b64_tr_b16 v[{VF+4}:{VF+5}], v{vVrd} offset:{32*du+32*RS}")
        k.e(f"ds_read_b64_tr_b16 v[{VF+6}:{VF+7}], v{vVrd} offset:{32*du+32*RS}")
        k.e("s_waitcnt lgkmcnt(0)")
        k.e(f"v_mfma_f32_16x16x32_bf16 v[{OACC+4*du}:{OACC+4*du+3}], v[{VF}:{VF+3}], v[{PF}:{PF+3}], v[{OACC+4*du}:{OACC+4*du+3}]")
        k.e(f"v_mfma_f32_16x16x32_bf16 v[{OACC+4*du}:{OACC+4*du+3}], v[{VF+4}:{VF+7}], v[{PF+4}:{PF+7}], v[{OACC+4*du}:{OACC+4*du+3}]")
    k.e("s_nop 7")
    k.e("s_nop 3")
    for du in range(2):
        k.e(f"v_cvt_pk_bf16_f32 v{vT1}, v{OACC+4*du}, v{OACC+4*du+1}")
        k.e(f"v_cvt_pk_bf16_f32 v{vT2}, v{OACC+4*du+2}, v{OACC+4*du+3}")
        k.e(f"ds_write_b64 v{vOwr}, v[{vT1}:{vT2}] offset:{32*du}")
    k.e("s_waitcnt lgkmcnt(0)")
    k.e("s_barrier")
    if os.environ.get('REC_DUMP'):
        k.e(f"v_lshlrev_b32 v{vT1}, 4, v0")
        k.e("s_mul_i32 s24, s2, 65536")
        k.e(f"s_add_u32 s24, s24, {128*MiB}")
        for i in range(9):
            k.e(f"ds_read_b128 v[{MF+32}:{MF+35}], v{vT1} offset:{4096*i}")
            k.e("s_waitcnt lgkmcnt(0)")
            k.e(f"buffer_store_dwordx4 v[{MF+32}:{MF+35}], v{vT1}, s[4:7], s24 offen offset:0")
            k.e("s_add_u32 s24, s24, 4096")
            k.e("s_waitcnt vmcnt(0)")
        k.e(f"s_branch {end}")
    OF = MF + 32
    for ks in range(4):
        k.e(f"ds_read_b128 v[{OF+4*ks}:{OF+4*ks+3}], v{vKrd} offset:{OL+64*ks}")
    for u in range(2):
        for i in range(4):
            k.e(f"v_mov_b32 v{ACC+4*u+i}, 0")
    k.e("s_waitcnt lgkmcnt(0)")
    for u in range(2):
        for ks in range(4):
            w = WO + (u * 4 + ks) * 4
            k.e(f"v_mfma_f32_16x16x32_bf16 v[{ACC+4*u}:{ACC+4*u+3}], v[{w}:{w+3}], v[{OF+4*ks}:{OF+4*ks+3}], v[{ACC+4*u}:{ACC+4*u+3}]")
    k.e("s_nop 7")
    k.e("s_nop 3")
    k.e(f"s_mul_i32 s24, s29, {32*65536}")
    k.e(f"s_add_u32 s24, s24, {PART_OFF}")
    k.e(f"v_cmp_gt_u32 vcc, 8, v{vM}")
    k.e("s_and_saveexec_b64 s[32:33], vcc")
    for u in range(2):
        a = ACC + 4 * u
        k.e(f"v_mov_b32 v{MF}, v{a}")
        k.e(f"v_mov_b32 v{MF+1}, s23")
        k.e(f"v_mov_b32 v{MF+2}, v{a+1}")
        k.e(f"v_mov_b32 v{MF+3}, s23")
        k.e(f"v_mov_b32 v{MF+4}, v{a+2}")
        k.e(f"v_mov_b32 v{MF+5}, s23")
        k.e(f"v_mov_b32 v{MF+6}, v{a+3}")
        k.e(f"v_mov_b32 v{MF+7}, s23")
        k.e(f"buffer_store_dwordx4 v[{MF}:{MF+3}], v{vPst}, s[4:7], s24 offen offset:{1024*u} sc0 sc1")
        k.e(f"buffer_store_dwordx4 v[{MF+4}:{MF+7}], v{vPst}, s[4:7], s24 offen offset:{1024*u+16} sc0 sc1")
        k.e("s_nop 1")
    k.e("s_mov_b64 exec, s[32:33]")
    nored = k.newlabel("nored")
    k.e("s_cmp_lg_u32 s3, 0")
    k.e(f"s_cbranch_scc1 {nored}")
    k.e("s_mov_b32 s30, 0")
    pl = k.newlabel("pollp")
    k.label(pl)
    k.e("s_mov_b32 s25, s24")
    for m8 in range(8):
        k.e(f"buffer_load_dwordx4 v[{MF+4*m8}:{MF+4*m8+3}], v{vPld}, s[4:7], s25 offen sc0 sc1")
        k.e("s_add_u32 s25, s25, 262144")
    k.e("s_waitcnt vmcnt(0)")
    k.e(f"v_xor_b32 v{vT0}, s23, v{MF+1}")
    k.e(f"v_xor_b32 v{vT1}, s23, v{MF+3}")
    for q in range(1, 8):
        k.e(f"v_xor_b32 v{vT2}, s23, v{MF+4*q+1}")
        k.e(f"v_xor_b32 v{vT3}, s23, v{MF+4*q+3}")
        k.e(f"v_or3_b32 v{vT0}, v{vT0}, v{vT2}, v{vT3}")
    k.e(f"v_or_b32 v{vT0}, v{vT0}, v{vT1}")
    k.e(f"v_cmp_ne_u32 vcc, 0, v{vT0}")
    k.e("s_add_u32 s30, s30, 1")
    k.e(f"s_cmp_ge_u32 s30, {POLL_MAX}")
    k.e(f"s_cbranch_scc1 {end}")
    k.e(f"s_cbranch_vccnz {pl}")
    for q in range(1, 8):
        k.e(f"v_add_f32 v{MF}, v{MF}, v{MF+4*q}")
        k.e(f"v_add_f32 v{MF+2}, v{MF+2}, v{MF+4*q+2}")
    for x in (16, 32):
        k.e(f"v_xor_b32 v{vT1}, {x}, v{vL}")
        k.e(f"v_lshlrev_b32 v{vT1}, 2, v{vT1}")
        k.e(f"ds_bpermute_b32 v{vT2}, v{vT1}, v{MF}")
        k.e(f"ds_bpermute_b32 v{vT3}, v{vT1}, v{MF+2}")
        k.e("s_waitcnt lgkmcnt(0)")
        k.e(f"v_add_f32 v{MF}, v{MF}, v{vT2}")
        k.e(f"v_add_f32 v{MF+2}, v{MF+2}, v{vT3}")
    k.e(f"v_cvt_pk_bf16_f32 v{MF}, v{MF}, v{MF+2}")
    k.e(f"v_mov_b32 v{MF+1}, s23")
    k.e("s_xor_b32 s25, s29, 1")
    k.e("s_lshl_b32 s25, s25, 15")
    k.e(f"s_add_u32 s25, s25, {MEMX_OFF}")
    k.e(f"v_cmp_gt_u32 vcc, 16, v{vL}")
    k.e("s_and_saveexec_b64 s[32:33], vcc")
    k.e(f"buffer_store_dwordx2 v[{MF}:{MF+1}], v{vMXst}, s[4:7], s25 offen sc0 sc1")
    k.e("s_mov_b64 exec, s[32:33]")
    k.label(nored)
    k.e("s_add_u32 s22, s22, 1")
    k.e(f"s_branch {step}")
    k.label(end)
    return k, NV, LDS_BYTES


def clear_pre(k):
    n = (HAND_END - HAND_OFF + 16383) // 16384
    lb = k.newlabel("noclr")
    k.e(f"s_cmp_ge_u32 s2, {n}")
    k.e(f"s_cbranch_scc1 {lb}")
    srd(k, 4, 64, 65, "0x10000000")
    k.e("s_lshl_b32 s72, s2, 14")
    k.e(f"s_add_u32 s72, s72, {HAND_OFF}")
    k.e("v_lshlrev_b32 v1, 4, v0")
    k.e("v_mov_b32 v2, 0")
    k.e("v_mov_b32 v3, 0")
    k.e("v_mov_b32 v4, 0")
    k.e("v_mov_b32 v5, 0")
    k.e("buffer_store_dwordx4 v[2:5], v1, s[4:7], s72 offen")
    k.e("s_add_u32 s72, s72, 8192")
    k.e("buffer_store_dwordx4 v[2:5], v1, s[4:7], s72 offen")
    k.label(lb)


def softmax_tail(k, SC, n, vL, vT0, vT1, vT2):
    k.e(f"v_max3_f32 v{vT0}, v{SC}, v{SC+1}, v{SC+2}")
    q = 3
    while q < n:
        if q + 1 < n:
            k.e(f"v_max3_f32 v{vT0}, v{vT0}, v{SC+q}, v{SC+q+1}")
            q += 2
        else:
            k.e(f"v_max_f32 v{vT0}, v{vT0}, v{SC+q}")
            q += 1
    for x in (16, 32):
        k.e(f"v_xor_b32 v{vT1}, {x}, v{vL}")
        k.e(f"v_lshlrev_b32 v{vT1}, 2, v{vT1}")
        k.e(f"ds_bpermute_b32 v{vT2}, v{vT1}, v{vT0}")
        k.e("s_waitcnt lgkmcnt(0)")
        k.e(f"v_max_f32 v{vT0}, v{vT0}, v{vT2}")
    k.e("s_mov_b32 s24, 0x3fb8aa3b")
    for q in range(n):
        k.e(f"v_sub_f32 v{SC+q}, v{SC+q}, v{vT0}")
        k.e(f"v_mul_f32 v{SC+q}, s24, v{SC+q}")
        k.e(f"v_exp_f32 v{SC+q}, v{SC+q}")
    k.e("s_nop 0")
    k.e(f"v_add_f32 v{vT0}, v{SC}, v{SC+1}")
    for q in range(2, n):
        k.e(f"v_add_f32 v{vT0}, v{vT0}, v{SC+q}")
    for x in (16, 32):
        k.e(f"v_xor_b32 v{vT1}, {x}, v{vL}")
        k.e(f"v_lshlrev_b32 v{vT1}, 2, v{vT1}")
        k.e(f"ds_bpermute_b32 v{vT2}, v{vT1}, v{vT0}")
        k.e("s_waitcnt lgkmcnt(0)")
        k.e(f"v_add_f32 v{vT0}, v{vT0}, v{vT2}")
    k.e(f"v_rcp_f32 v{vT0}, v{vT0}")
    k.e("s_nop 0")
    for q in range(n):
        k.e(f"v_mul_f32 v{SC+q}, v{SC+q}, v{vT0}")


def round_scale(k, SC, n, scale_hex):
    k.e(f"s_mov_b32 s24, {scale_hex}")
    for q in range(n):
        k.e(f"v_cvt_pk_bf16_f32 v{SC+q}, v{SC+q}, v{SC+q}")
        k.e(f"v_lshlrev_b32 v{SC+q}, 16, v{SC+q}")
        k.e(f"v_mul_f32 v{SC+q}, s24, v{SC+q}")
        k.e(f"v_cvt_pk_bf16_f32 v{SC+q}, v{SC+q}, v{SC+q}")
        k.e(f"v_lshlrev_b32 v{SC+q}, 16, v{SC+q}")


def attnB_kernel(name):
    k = K(name)
    RS = 272
    vL, vM, vG, vT0, vT1, vT2, vT3 = 1, 2, 3, 4, 6, 7, 8
    vA0, vA1, vVrd, vVw = 9, 10, 11, 12
    QF = 16
    KF = 48
    SC = 64
    PF = 76
    VF = 92
    OA = 100
    NV = 108
    end = f"{name}_end"
    k.e("s_cmp_ge_u32 s2, 512")
    k.e(f"s_cbranch_scc1 {end}")
    k.e("s_load_dwordx2 s[64:65], s[0:1], 96")
    k.e(f"v_and_b32 v{vL}, 63, v0")
    k.e(f"v_lshrrev_b32 v{vT0}, 6, v0")
    k.e("s_nop 1")
    k.e(f"v_readfirstlane_b32 s3, v{vT0}")
    k.e(f"v_and_b32 v{vM}, 15, v{vL}")
    k.e(f"v_lshrrev_b32 v{vG}, 4, v{vL}")
    k.e("s_lshr_b32 s20, s2, 3")
    k.e("s_and_b32 s21, s2, 7")
    k.e("s_lshl_b32 s21, s21, 2")
    k.e("s_add_u32 s21, s21, s3")
    k.e("s_waitcnt lgkmcnt(0)")
    srd(k, 4, 64, 65, "0x10000000")
    k.e("s_mov_b32 s24, 24576")
    k.e(f"v_mul_lo_u32 v{vA0}, v{vM}, s24")
    k.e(f"v_lshl_add_u32 v{vA0}, v{vG}, 4, v{vA0}")
    k.e(f"s_mul_i32 s25, s20, {32*24576}")
    k.e("s_lshl_b32 s26, s21, 8")
    k.e("s_add_u32 s25, s25, s26")
    k.e(f"s_add_u32 s25, s25, {QKVB_OFF}")
    for qt in range(2):
        k.e(f"s_add_u32 s27, s25, {qt*16*24576}")
        for ks in range(4):
            k.e(f"buffer_load_dwordx4 v[{QF+16*qt+4*ks}:{QF+16*qt+4*ks+3}], v{vA0}, s[4:7], s27 offen offset:{64*ks}")
    k.e(f"s_mul_i32 s28, s3, {48*RS}")
    k.e(f"v_lshrrev_b32 v{vT0}, 4, v{vL}")
    k.e(f"v_mul_lo_u32 v{vT1}, v{vT0}, s24")
    k.e(f"v_lshl_add_u32 v{vT1}, v{vM}, 4, v{vT1}")
    k.e(f"v_mul_u32_u24 v{vVw}, {RS}, v{vT0}")
    k.e(f"v_lshl_add_u32 v{vVw}, v{vM}, 4, v{vVw}")
    k.e(f"v_add_u32 v{vVw}, s28, v{vVw}")
    k.e(f"s_add_u32 s27, s25, 16384")
    for i in range(8):
        k.e(f"buffer_load_dwordx4 v[{KF+4*(i%4)}:{KF+4*(i%4)+3}], v{vT1}, s[4:7], s27 offen")
        k.e(f"s_add_u32 s27, s27, {4*24576}")
        if i % 4 == 3:
            k.e("s_waitcnt vmcnt(0)")
            for i2 in range(4):
                k.e(f"ds_write_b128 v{vVw}, v[{KF+4*i2}:{KF+4*i2+3}] offset:{(i-3+i2)*4*RS}")
    k.e(f"v_lshlrev_b32 v{vT2}, 14, v{vT0}")
    k.e(f"v_lshl_add_u32 v{vT2}, v{vM}, 4, v{vT2}")
    k.e("s_lshl_b32 s27, s20, 17")
    k.e("s_add_u32 s27, s27, s26")
    k.e(f"s_add_u32 s29, s27, {MEMKV_OFF}")
    k.e("s_add_u32 s27, s29, 8192")
    for i in range(2):
        k.e(f"buffer_load_dwordx4 v[{KF+4*i}:{KF+4*i+3}], v{vT2}, s[4:7], s27 offen")
        k.e("s_add_u32 s27, s27, 65536")
    for i in range(4):
        k.e(f"v_mov_b32 v{KF+8+i}, 0")
    k.e("s_waitcnt vmcnt(0)")
    for i in range(2):
        k.e(f"ds_write_b128 v{vVw}, v[{KF+4*i}:{KF+4*i+3}] offset:{(32+4*i)*RS}")
    for i in range(2):
        k.e(f"ds_write_b128 v{vVw}, v[{KF+8}:{KF+11}] offset:{(40+4*i)*RS}")
    k.e(f"v_lshrrev_b32 v{vT0}, 2, v{vM}")
    k.e(f"v_lshl_add_u32 v{vT0}, v{vG}, 2, v{vT0}")
    k.e(f"v_mul_u32_u24 v{vT0}, {RS}, v{vT0}")
    k.e(f"v_and_b32 v{vT1}, 3, v{vL}")
    k.e(f"v_lshl_add_u32 v{vT0}, v{vT1}, 3, v{vT0}")
    k.e(f"v_add_u32 v{vVrd}, s28, v{vT0}")
    k.e(f"v_and_b32 v{vT0}, 7, v{vM}")
    k.e(f"v_lshlrev_b32 v{vT0}, 14, v{vT0}")
    k.e(f"v_lshl_add_u32 v{vA1}, v{vG}, 4, v{vT0}")
    for qt in range(2):
        for T in range(3):
            for i in range(4):
                k.e(f"v_mov_b32 v{SC+4*T+i}, 0")
        for T in range(3):
            if T < 2:
                k.e(f"s_add_u32 s27, s25, {8192 + T*16*24576}")
                for ks in range(4):
                    k.e(f"buffer_load_dwordx4 v[{KF+4*ks}:{KF+4*ks+3}], v{vA0}, s[4:7], s27 offen offset:{64*ks}")
            else:
                for ks in range(4):
                    k.e(f"buffer_load_dwordx4 v[{KF+4*ks}:{KF+4*ks+3}], v{vA1}, s[4:7], s29 offen offset:{64*ks}")
            k.e("s_waitcnt vmcnt(0)")
            for ks in range(4):
                k.e(f"v_mfma_f32_16x16x32_bf16 v[{SC+4*T}:{SC+4*T+3}], v[{KF+4*ks}:{KF+4*ks+3}], v[{QF+16*qt+4*ks}:{QF+16*qt+4*ks+3}], v[{SC+4*T}:{SC+4*T+3}]")
        k.e("s_nop 7")
        k.e("s_nop 3")
        round_scale(k, SC, 12, "0x3db504f3")
        k.e("s_mov_b32 s24, 0xf149f2ca")
        for T in range(2):
            for r in range(4):
                k.e(f"v_lshl_add_u32 v{vT0}, v{vG}, 2, {16*T + r - 16*qt}")
                k.e(f"v_cmp_gt_i32 vcc, v{vT0}, v{vM}")
                k.e(f"v_mov_b32 v{vT1}, s24")
                k.e(f"v_cndmask_b32 v{SC+4*T+r}, v{SC+4*T+r}, v{vT1}, vcc")
        k.e(f"v_cmp_le_u32 vcc, 2, v{vG}")
        k.e(f"v_mov_b32 v{vT1}, s24")
        for r in range(4):
            k.e(f"v_cndmask_b32 v{SC+8+r}, v{SC+8+r}, v{vT1}, vcc")
        softmax_tail(k, SC, 12, vL, vT0, vT1, vT2)
        P = PF + 8 * qt
        for i in range(6):
            k.e(f"v_cvt_pk_bf16_f32 v{P+i}, v{SC+2*i}, v{SC+2*i+1}")
        k.e(f"v_mov_b32 v{P+6}, 0")
        k.e(f"v_mov_b32 v{P+7}, 0")
    k.e("s_waitcnt lgkmcnt(0)")
    k.e(f"v_lshlrev_b32 v{vT3}, 13, v{vM}")
    k.e(f"v_lshl_add_u32 v{vT3}, v{vG}, 3, v{vT3}")
    k.e("s_lshl_b32 s27, s20, 18")
    k.e("s_add_u32 s27, s27, s26")
    k.e(f"s_add_u32 s27, s27, {OB_OFF}")
    for dt in range(8):
        k.e(f"ds_read_b64_tr_b16 v[{VF}:{VF+1}], v{vVrd} offset:{32*dt}")
        k.e(f"ds_read_b64_tr_b16 v[{VF+2}:{VF+3}], v{vVrd} offset:{32*dt+16*RS}")
        k.e(f"ds_read_b64_tr_b16 v[{VF+4}:{VF+5}], v{vVrd} offset:{32*dt+32*RS}")
        k.e(f"ds_read_b64_tr_b16 v[{VF+6}:{VF+7}], v{vVrd} offset:{32*dt+32*RS}")
        k.e("s_waitcnt lgkmcnt(0)")
        for qt in range(2):
            P = PF + 8 * qt
            k.e(f"v_mfma_f32_16x16x32_bf16 v[{OA}:{OA+3}], v[{VF}:{VF+3}], v[{P}:{P+3}], 0")
            k.e(f"v_mfma_f32_16x16x32_bf16 v[{OA}:{OA+3}], v[{VF+4}:{VF+7}], v[{P+4}:{P+7}], v[{OA}:{OA+3}]")
            k.e("s_nop 7")
            k.e("s_nop 3")
            k.e(f"v_cvt_pk_bf16_f32 v{vT1}, v{OA}, v{OA+1}")
            k.e(f"v_cvt_pk_bf16_f32 v{vT2}, v{OA+2}, v{OA+3}")
            k.e(f"s_add_u32 s30, s27, {qt*16*8192}")
            k.e(f"buffer_store_dwordx2 v[{vT1}:{vT2}], v{vT3}, s[4:7], s30 offen offset:{32*dt}")
            k.e("s_nop 1")
    k.label(end)
    return k, NV, 4 * 48 * RS


def attnA_kernel(name):
    k = K(name)
    RSV = 80
    vL, vM, vG, vT0, vT1, vT2, vT3 = 1, 2, 3, 4, 6, 7, 8
    vA0, vVrd = 9, 10
    QF = 12
    KF = 16
    SC = 32
    PF = 100
    VF = 136
    OA = 140
    NV = 148
    end = f"{name}_end"
    k.e("s_cmp_ge_u32 s2, 1024")
    k.e(f"s_cbranch_scc1 {end}")
    k.e("s_load_dwordx2 s[64:65], s[0:1], 96")
    k.e(f"v_and_b32 v{vL}, 63, v0")
    k.e(f"v_lshrrev_b32 v{vT0}, 6, v0")
    k.e("s_nop 1")
    k.e(f"v_readfirstlane_b32 s3, v{vT0}")
    k.e(f"v_and_b32 v{vM}, 15, v{vL}")
    k.e(f"v_lshrrev_b32 v{vG}, 4, v{vL}")
    k.e("s_and_b32 s20, s2, 31")
    k.e("s_lshr_b32 s21, s2, 5")
    k.e("s_waitcnt lgkmcnt(0)")
    srd(k, 4, 64, 65, "0x10000000")
    k.e("s_lshl_b32 s22, s21, 6")
    k.e("s_lshl_b32 s23, s3, 4")
    k.e("s_add_u32 s23, s23, s22")
    k.e("s_mov_b32 s24, 6144")
    k.e(f"v_mul_lo_u32 v{vA0}, v{vM}, s24")
    k.e(f"v_lshl_add_u32 v{vA0}, v{vG}, 4, v{vA0}")
    k.e("s_lshl_b32 s26, s20, 6")
    k.e("s_mul_i32 s27, s23, 6144")
    k.e("s_add_u32 s27, s27, s26")
    k.e(f"buffer_load_dwordx4 v[{QF}:{QF+3}], v{vA0}, s[4:7], s27 offen")
    k.e(f"v_lshrrev_b32 v{vT0}, 2, v0")
    k.e(f"v_and_b32 v{vT1}, 3, v0")
    k.e(f"v_mul_u32_u24 v{vT3}, {RSV}, v{vT0}")
    k.e(f"v_lshl_add_u32 v{vT3}, v{vT1}, 4, v{vT3}")
    for i in range(5):
        k.e(f"s_add_i32 s27, s22, {64*i-256}")
        k.e(f"v_add_u32 v{vT2}, s27, v{vT0}")
        k.e(f"v_max_i32 v{vT2}, 0, v{vT2}")
        k.e(f"v_mul_lo_u32 v{vT2}, v{vT2}, s24")
        k.e(f"v_lshl_add_u32 v{vT2}, v{vT1}, 4, v{vT2}")
        k.e(f"s_add_u32 s28, s26, 4096")
        k.e(f"buffer_load_dwordx4 v[{KF}:{KF+3}], v{vT2}, s[4:7], s28 offen")
        k.e("s_waitcnt vmcnt(0)")
        k.e(f"ds_write_b128 v{vT3}, v[{KF}:{KF+3}] offset:{64*i*RSV}")
    k.e("s_waitcnt lgkmcnt(0)")
    k.e("s_barrier")
    for kt in range(17):
        k.e(f"s_add_i32 s27, s23, {16*kt-256}")
        k.e(f"v_add_u32 v{vT2}, s27, v{vM}")
        k.e(f"v_max_i32 v{vT2}, 0, v{vT2}")
        k.e(f"v_mul_lo_u32 v{vT2}, v{vT2}, s24")
        k.e(f"v_lshl_add_u32 v{vT2}, v{vG}, 4, v{vT2}")
        k.e(f"s_add_u32 s28, s26, 2048")
        k.e(f"buffer_load_dwordx4 v[{KF+4*(kt%4)}:{KF+4*(kt%4)+3}], v{vT2}, s[4:7], s28 offen")
        if kt % 4 == 3 or kt == 16:
            k.e("s_waitcnt vmcnt(0)")
            for k2 in range(kt - (kt % 4), kt + 1):
                k.e(f"v_mfma_f32_16x16x32_bf16 v[{SC+4*k2}:{SC+4*k2+3}], v[{KF+4*(k2%4)}:{KF+4*(k2%4)+3}], v[{QF}:{QF+3}], 0")
    k.e("s_nop 7")
    k.e("s_nop 3")
    round_scale(k, SC, 68, "0x3e3504f3")
    k.e("s_mov_b32 s24, 0xf149f2ca")
    k.e(f"v_lshlrev_b32 v{vT3}, 2, v{vG}")
    k.e(f"v_sub_u32 v{vT3}, v{vM}, v{vT3}")
    k.e(f"v_mov_b32 v{vT1}, s24")
    for kt in range(17):
        for r in range(4):
            k.e(f"v_add_u32 v{vT0}, {256-16*kt-r}, v{vT3}")
            k.e(f"v_cmp_lt_u32 vcc, 255, v{vT0}")
            k.e(f"v_cndmask_b32 v{SC+4*kt+r}, v{SC+4*kt+r}, v{vT1}, vcc")
            k.e(f"s_add_i32 s27, s23, {16*kt-256+r}")
            k.e(f"v_lshl_add_u32 v{vT2}, v{vG}, 2, s27")
            k.e(f"v_cmp_gt_i32 vcc, 0, v{vT2}")
            k.e(f"v_cndmask_b32 v{SC+4*kt+r}, v{SC+4*kt+r}, v{vT1}, vcc")
    softmax_tail(k, SC, 68, vL, vT0, vT1, vT2)
    for i in range(34):
        k.e(f"v_cvt_pk_bf16_f32 v{PF+i}, v{SC+2*i}, v{SC+2*i+1}")
    k.e(f"v_mov_b32 v{PF+34}, 0")
    k.e(f"v_mov_b32 v{PF+35}, 0")
    k.e(f"v_lshrrev_b32 v{vT0}, 2, v{vM}")
    k.e(f"v_lshl_add_u32 v{vT0}, v{vG}, 2, v{vT0}")
    k.e("s_lshl_b32 s27, s3, 4")
    k.e(f"v_add_u32 v{vT0}, s27, v{vT0}")
    k.e(f"v_mul_u32_u24 v{vT0}, {RSV}, v{vT0}")
    k.e(f"v_and_b32 v{vT1}, 3, v{vL}")
    k.e(f"v_lshl_add_u32 v{vVrd}, v{vT1}, 3, v{vT0}")
    for dt in range(2):
        for i in range(4):
            k.e(f"v_mov_b32 v{OA+4*dt+i}, 0")
    for kp in range(9):
        for dt in range(2):
            k.e(f"ds_read_b64_tr_b16 v[{VF}:{VF+1}], v{vVrd} offset:{32*dt+32*kp*RSV}")
            kt2 = min(2 * kp + 1, 16)
            k.e(f"ds_read_b64_tr_b16 v[{VF+2}:{VF+3}], v{vVrd} offset:{32*dt+16*kt2*RSV}")
            k.e("s_waitcnt lgkmcnt(0)")
            k.e(f"v_mfma_f32_16x16x32_bf16 v[{OA+4*dt}:{OA+4*dt+3}], v[{VF}:{VF+3}], v[{PF+4*kp}:{PF+4*kp+3}], v[{OA+4*dt}:{OA+4*dt+3}]")
    k.e("s_nop 7")
    k.e("s_nop 3")
    k.e(f"v_lshlrev_b32 v{vT3}, 11, v{vM}")
    k.e(f"v_lshl_add_u32 v{vT3}, v{vG}, 3, v{vT3}")
    k.e("s_lshl_b32 s27, s23, 11")
    k.e("s_add_u32 s27, s27, s26")
    k.e(f"s_add_u32 s27, s27, {OA_OFF}")
    for dt in range(2):
        k.e(f"v_cvt_pk_bf16_f32 v{vT1}, v{OA+4*dt}, v{OA+4*dt+1}")
        k.e(f"v_cvt_pk_bf16_f32 v{vT2}, v{OA+4*dt+2}, v{OA+4*dt+3}")
        k.e(f"buffer_store_dwordx2 v[{vT1}:{vT2}], v{vT3}, s[4:7], s27 offen offset:{32*dt}")
        k.e("s_nop 1")
    k.label(end)
    return k, NV, 320 * RSV


def decode_g2(k):
    lb = k.newlabel("g2a")
    ld = k.newlabel("g2d")
    k.e("s_and_b32 s76, s2, 127")
    k.e("s_lshr_b32 s72, s76, 3")
    k.e("s_and_b32 s73, s76, 7")
    k.e("s_lshl_b32 s75, s73, 8")
    k.e(f"s_mul_i32 s74, s72, {128*4096}")
    k.e("s_add_u32 s74, s74, s75")
    k.e("s_cmp_ge_u32 s2, 128")
    k.e(f"s_cbranch_scc1 {lb}")
    k.e(f"s_mul_i32 s77, s72, {128*8192}")
    k.e(f"s_add_u32 s77, s77, {OB_OFF}")
    add64(k, 20, 21, 64, 65, 77)
    add64(k, 22, 23, 56, 57, 75)
    k.e("s_add_u32 s74, s74, 2048")
    add64(k, 24, 25, 60, 61, 74)
    k.e("s_mov_b32 s26, 8192")
    k.e("s_mov_b32 s29, 64")
    k.e(f"s_branch {ld}")
    k.label(lb)
    k.e(f"s_mul_i32 s77, s72, {128*2048}")
    k.e(f"s_add_u32 s77, s77, {OA_OFF}")
    add64(k, 20, 21, 64, 65, 77)
    add64(k, 22, 23, 44, 45, 75)
    add64(k, 24, 25, 60, 61, 74)
    k.e("s_mov_b32 s26, 2048")
    k.e("s_mov_b32 s29, 16")
    k.label(ld)
    k.e("s_mov_b32 s27, 2048")
    k.e("s_mov_b32 s28, 4096")


def main():
    out = []
    launches = []
    g1, nv = gemm_kernel("gemm1_kernel", 256, 256, 4, 2, decode_g1, 96 + 384, pre=clear_pre)
    out.append(kernel_wrap(g1, nv))
    launches.append(("gemm1_kernel", 480, 512, 131072))
    rk, nv, lds = rec_kernel("rec_kernel")
    out.append(kernel_wrap(rk, nv))
    launches.append(("rec_kernel", 256, 256, lds))
    ak, nv, lds = attnA_kernel("attnA_kernel")
    out.append(kernel_wrap(ak, nv))
    launches.append(("attnA_kernel", 1024, 256, lds))
    bk, nv, lds = attnB_kernel("attnB_kernel")
    out.append(kernel_wrap(bk, nv))
    launches.append(("attnB_kernel", 512, 256, lds))
    g2, nv = gemm_kernel("gemm2_kernel", 128, 128, 2, 2, decode_g2, 256)
    out.append(kernel_wrap(g2, nv))
    launches.append(("gemm2_kernel", 256, 256, 65536))
    hdr = []
    for (n, g, b, lds) in launches:
        hdr.append(f"; @launch kernel={n} grid=({g},1,1) block=({b},1,1) lds={lds}")
    hdr.append('.amdgcn_target "amdgcn-amd-amdhsa--gfx950"')
    print("\n".join(hdr) + "\n" + "\n".join(out))


if __name__ == "__main__":
    main()
```

```python
import sys

MiB = 1 << 20
QKVA_OFF = 0
QKVB_OFF = 12 * MiB
OA_OFF = 60 * MiB
OB_OFF = 64 * MiB
MEMKV_OFF = 80 * MiB
HAND_OFF = 96 * MiB

KA = dict(A_x=0, A_wqkv=8, A_wo=16, B_x=24, B_mem0=32, B_Wq=40, B_Wk=48, B_Wv=56, B_Wo=64,
          seg=72, out=80, dbg=88, ws=96)


class K:
    def __init__(self, name):
        self.name = name
        self.L = []
        self.lbl = 0

    def e(self, s):
        import re
        m = re.search(r"offset:(\d+)", s)
        if m and s.startswith("buffer_"):
            assert int(m.group(1)) < 4096, s
        if m and s.startswith("ds_"):
            assert int(m.group(1)) < 65536, s
        self.L.append("    " + s)

    def label(self, s):
        self.L.append(s + ":")

    def newlabel(self, p="L"):
        self.lbl += 1
        return f"{self.name}_{p}{self.lbl}"

    def text(self):
        return "\n".join(self.L)


def kernel_wrap(k, vgprs, sgprs=102, lds_unused=0):
    acc = (vgprs + 3) // 4 * 4
    return f"""
.text
.globl {k.name}
.p2align 8
.type {k.name},@function
{k.name}:
{k.text()}
    s_endpgm
.section .rodata,"a"
.p2align 6
.amdhsa_kernel {k.name}
  .amdhsa_next_free_vgpr {vgprs}
  .amdhsa_next_free_sgpr {sgprs}
  .amdhsa_accum_offset {acc}
  .amdhsa_group_segment_fixed_size 0
  .amdhsa_kernarg_size 104
  .amdhsa_user_sgpr_count 2
  .amdhsa_user_sgpr_kernarg_segment_ptr 1
  .amdhsa_system_sgpr_workgroup_id_x 1
.end_amdhsa_kernel
"""


def srd(k, s, base_lo, base_hi, nrec="0x7ffffff0"):
    k.e(f"s_mov_b32 s{s}, s{base_lo}")
    k.e(f"s_and_b32 s{s+1}, s{base_hi}, 0xffff")
    k.e(f"s_mov_b32 s{s+2}, {nrec}")
    k.e(f"s_mov_b32 s{s+3}, 0x00020000")


def gemm_kernel(name, BM, BN, WM, WN, decode, ntiles, pre=None):
    k = K(name)
    NW = WM * WN
    WTM, WTN = BM // WM, BN // WN
    MT, NT = WTM // 16, WTN // 16
    A_BYTES = BM * 128
    B_BYTES = 64 * BN * 2
    STG = A_BYTES + B_BYTES
    nA = BM // 8 // NW
    RPI = 1024 // (BN * 2)
    nB = 64 // RPI // NW
    ACC = 0
    XF = ACC + MT * NT * 4
    WF = XF + MT * 4
    VA = WF + NT * 4
    VB = VA + 4
    VDA = VB + 2 * NT
    VDB = VDA + 2
    VC = VDB + 2
    VT = VC + 1
    NV = VT + 8
    assert NV <= 256, NV

    k.e(f"s_cmp_ge_u32 s2, {ntiles}")
    k.e(f"s_cbranch_scc1 {name}_end")
    k.e("s_load_dwordx16 s[40:55], s[0:1], 0")
    k.e("s_load_dwordx8 s[56:63], s[0:1], 64")
    k.e("s_load_dwordx2 s[64:65], s[0:1], 96")
    k.e(f"v_and_b32 v{VT}, 63, v0")
    k.e(f"v_lshrrev_b32 v{VT+1}, 6, v0")
    k.e("s_nop 1")
    k.e(f"v_readfirstlane_b32 s3, v{VT+1}")
    k.e("s_waitcnt lgkmcnt(0)")
    if pre:
        pre(k)
    decode(k)
    srd(k, 4, 20, 21)
    srd(k, 8, 22, 23)
    srd(k, 12, 24, 25)
    l = VT
    import math
    lgWN = int(math.log2(WN))
    k.e(f"s_lshr_b32 s30, s3, {lgWN}")
    k.e(f"s_and_b32 s31, s3, {WN-1}")
    t0, t1, t2, t3 = VT + 2, VT + 3, VT + 4, VT + 5
    k.e(f"v_and_b32 v{t0}, 15, v{l}")
    k.e(f"v_lshrrev_b32 v{t1}, 4, v{l}")
    k.e(f"v_lshrrev_b32 v{t2}, 1, v{t0}")
    k.e(f"s_mul_i32 s32, s30, {WTM*128}")
    for kc in range(2):
        k.e(f"v_or_b32 v{t3}, {4*kc}, v{t1}")
        k.e(f"v_xor_b32 v{t3}, v{t3}, v{t2}")
        k.e(f"v_lshlrev_b32 v{t3}, 4, v{t3}")
        k.e(f"v_lshl_add_u32 v{t3}, v{t0}, 7, v{t3}")
        k.e(f"v_add_u32 v{VA+kc}, s32, v{t3}")
        k.e(f"v_add_u32 v{VA+2+kc}, {STG}, v{VA+kc}")
    k.e(f"v_lshrrev_b32 v{t2}, 2, v{t0}")
    k.e(f"v_and_b32 v{t3}, 1, v{t1}")
    k.e(f"v_lshl_or_b32 v{t3}, v{t3}, 2, v{t2}")
    k.e(f"v_lshlrev_b32 v{t3}, 1, v{t3}")
    k.e(f"v_lshl_add_u32 v{t2}, v{t1}, 3, v{t2}")
    k.e(f"s_mov_b32 s33, {BN*2}")
    k.e(f"v_mul_lo_u32 v{t2}, v{t2}, s33")
    k.e(f"v_and_b32 v{t0}, 3, v{l}")
    k.e(f"v_and_b32 v{t1}, 1, v{t0}")
    k.e(f"v_lshl_add_u32 v{t2}, v{t1}, 3, v{t2}")
    k.e(f"v_add_u32 v{t2}, {A_BYTES}, v{t2}")
    k.e(f"v_lshrrev_b32 v{t0}, 1, v{t0}")
    k.e(f"s_mul_i32 s32, s31, {NT*2}")
    for nt in range(NT):
        k.e(f"s_add_u32 s33, s32, {2*nt}")
        k.e(f"v_or_b32 v{t1}, s33, v{t0}")
        k.e(f"v_xor_b32 v{t1}, v{t1}, v{t3}")
        k.e(f"v_lshl_add_u32 v{VB+nt}, v{t1}, 4, v{t2}")
        k.e(f"v_add_u32 v{VB+NT+nt}, {STG}, v{VB+nt}")
    k.e(f"v_lshrrev_b32 v{t0}, 3, v{l}")
    k.e(f"v_mul_lo_u32 v{t0}, v{t0}, s26")
    k.e(f"v_and_b32 v{t1}, 7, v{l}")
    k.e(f"v_lshrrev_b32 v{t2}, 4, v{l}")
    for par in range(2):
        k.e(f"v_or_b32 v{t3}, {4*par}, v{t2}")
        k.e(f"v_xor_b32 v{t3}, v{t3}, v{t1}")
        k.e(f"v_lshl_add_u32 v{VDA+par}, v{t3}, 4, v{t0}")
    CPR = BN * 2 // 16
    lgCPR = int(math.log2(CPR))
    assert nB == 4
    k.e(f"v_lshrrev_b32 v{t0}, {lgCPR}, v{l}")
    k.e(f"v_and_b32 v{t1}, {CPR-1}, v{l}")
    k.e(f"v_mul_lo_u32 v{t2}, v{t0}, s27")
    for par in range(2):
        if RPI == 2:
            k.e(f"s_and_b32 s33, s3, 1")
            k.e(f"s_lshl_b32 s33, s33, 2")
            k.e(f"s_or_b32 s33, s33, {2*par}")
            k.e(f"v_or_b32 v{t3}, s33, v{t0}")
        else:
            k.e(f"v_or_b32 v{t3}, {4*par}, v{t0}")
        k.e(f"v_lshlrev_b32 v{t3}, 1, v{t3}")
        k.e(f"v_xor_b32 v{t3}, v{t3}, v{t1}")
        k.e(f"v_lshl_add_u32 v{VDB+par}, v{t3}, 4, v{t2}")
    k.e(f"v_and_b32 v{t0}, 15, v{l}")
    k.e(f"s_mul_i32 s32, s30, {WTM}")
    k.e(f"v_add_u32 v{t0}, s32, v{t0}")
    k.e(f"v_mul_lo_u32 v{t0}, v{t0}, s28")
    k.e(f"v_lshrrev_b32 v{t1}, 4, v{l}")
    k.e(f"s_mul_i32 s32, s31, {WTN*2}")
    k.e(f"v_lshl_add_u32 v{t0}, v{t1}, 3, v{t0}")
    k.e(f"v_add_u32 v{VC}, s32, v{t0}")
    k.e(f"s_lshl_b32 s35, s26, 3")
    k.e(f"s_mul_i32 s34, s3, {nA}")
    k.e(f"s_mul_i32 s34, s34, s35")
    k.e(f"s_mul_i32 s37, s27, {RPI}")
    k.e(f"s_mul_i32 s36, s3, {nB}")
    k.e(f"s_mul_i32 s36, s36, s37")
    k.e(f"s_lshl_b32 s38, s27, 6")
    k.e(f"s_mul_i32 s66, s3, {nA*1024}")
    k.e(f"s_mul_i32 s67, s3, {nB*1024}")
    k.e(f"s_add_u32 s67, s67, {A_BYTES}")
    for i in range(MT * NT * 4):
        k.e(f"v_mov_b32 v{ACC+i}, 0")

    def issue_dma(stage):
        for ii in range(nA):
            k.e(f"s_add_u32 m0, s66, {stage*STG + ii*1024}")
            if ii == 0:
                k.e("s_mov_b32 s39, s34")
            else:
                k.e("s_add_u32 s39, s39, s35")
            k.e(f"buffer_load_dwordx4 v{VDA + (ii & 1)}, s[4:7], s39 offen lds")
        for ii in range(nB):
            par = (ii & 1) if RPI == 2 else ((ii >> 1) & 1)
            k.e(f"s_add_u32 m0, s67, {stage*STG + ii*1024}")
            if ii == 0:
                k.e("s_mov_b32 s39, s36")
            else:
                k.e("s_add_u32 s39, s39, s37")
            k.e(f"buffer_load_dwordx4 v{VDB + par}, s[8:11], s39 offen lds")
        k.e("s_add_u32 s34, s34, 128")
        k.e("s_add_u32 s36, s36, s38")

    def compute(stage):
        for ks in range(2):
            for mt in range(MT):
                k.e(f"ds_read_b128 v[{XF+4*mt}:{XF+4*mt+3}], v{VA+2*stage+ks} offset:{mt*2048}")
            for nt in range(NT):
                for u in range(2):
                    k.e(f"ds_read_b64_tr_b16 v[{WF+4*nt+2*u}:{WF+4*nt+2*u+1}], v{VB+NT*stage+nt} "
                        f"offset:{(32*ks+4*u)*BN*2}")
            k.e("s_waitcnt lgkmcnt(0)")
            for mt in range(MT):
                for nt in range(NT):
                    a = ACC + (mt * NT + nt) * 4
                    k.e(f"v_mfma_f32_16x16x32_bf16 v[{a}:{a+3}], v[{WF+4*nt}:{WF+4*nt+3}], "
                        f"v[{XF+4*mt}:{XF+4*mt+3}], v[{a}:{a+3}]")

    k.e("s_nop 4")
    issue_dma(0)
    k.e("s_mov_b32 s70, 0")
    loop = k.newlabel("loop")
    k.label(loop)
    for stage in range(2):
        k.e("s_waitcnt vmcnt(0)")
        k.e("s_barrier")
        skip = k.newlabel("skip")
        k.e(f"s_add_u32 s71, s70, {stage+1}")
        k.e("s_cmp_ge_u32 s71, s29")
        k.e(f"s_cbranch_scc1 {skip}")
        issue_dma(1 - stage)
        k.label(skip)
        compute(stage)
    k.e("s_add_u32 s70, s70, 2")
    k.e("s_cmp_lt_u32 s70, s29")
    k.e(f"s_cbranch_scc1 {loop}")
    k.e("s_nop 7")
    k.e("s_nop 7")
    k.e("s_lshl_b32 s35, s28, 4")
    k.e("s_mov_b32 s39, 0")
    for mt in range(MT):
        for nt in range(NT):
            a = ACC + (mt * NT + nt) * 4
            k.e(f"v_cvt_pk_bf16_f32 v{a}, v{a}, v{a+1}")
            k.e(f"v_cvt_pk_bf16_f32 v{a+1}, v{a+2}, v{a+3}")
            k.e(f"buffer_store_dwordx2 v[{a}:{a+1}], v{VC}, s[12:15], s39 offen offset:{nt*32}")
        k.e("s_add_u32 s39, s39, s35")
    k.label(f"{name}_end")
    return k, NV


def add64(k, dlo, dhi, alo, ahi, b):
    k.e(f"s_add_u32 s{dlo}, s{alo}, s{b}")
    k.e(f"s_addc_u32 s{dhi}, s{ahi}, 0")


def decode_g1(k):
    lb = k.newlabel("g1b")
    ld = k.newlabel("g1d")
    k.e("s_cmp_ge_u32 s2, 96")
    k.e(f"s_cbranch_scc1 {lb}")
    k.e("s_mul_hi_u32 s72, s2, 0x15555556")
    k.e("s_mul_i32 s73, s72, 12")
    k.e("s_sub_u32 s73, s2, s73")
    k.e("s_lshl_b32 s74, s72, 19")
    add64(k, 20, 21, 40, 41, 74)
    k.e("s_lshl_b32 s74, s73, 9")
    add64(k, 22, 23, 42, 43, 74)
    k.e(f"s_mul_i32 s74, s72, {256*3072*2}")
    k.e("s_lshl_b32 s75, s73, 9")
    k.e("s_add_u32 s74, s74, s75")
    k.e(f"s_add_u32 s74, s74, {QKVA_OFF}")
    add64(k, 24, 25, 64, 65, 74)
    k.e("s_mov_b32 s26, 2048")
    k.e("s_mov_b32 s27, 6144")
    k.e("s_mov_b32 s28, 6144")
    k.e("s_mov_b32 s29, 16")
    k.e(f"s_branch {ld}")
    k.label(lb)
    k.e("s_sub_u32 s76, s2, 96")
    k.e("s_mul_hi_u32 s72, s76, 0x5555556")
    k.e("s_mul_i32 s73, s72, 48")
    k.e("s_sub_u32 s73, s76, s73")
    k.e("s_lshl_b32 s74, s72, 19")
    add64(k, 20, 21, 46, 47, 74)
    k.e("s_lshr_b32 s75, s73, 4")
    k.e("s_and_b32 s77, s73, 15")
    k.e("s_mov_b32 s22, s50")
    k.e("s_mov_b32 s23, s51")
    k.e("s_cmp_eq_u32 s75, 1")
    k.e("s_cselect_b32 s22, s52, s22")
    k.e("s_cselect_b32 s23, s53, s23")
    k.e("s_cmp_eq_u32 s75, 2")
    k.e("s_cselect_b32 s22, s54, s22")
    k.e("s_cselect_b32 s23, s55, s23")
    k.e("s_lshl_b32 s74, s77, 9")
    add64(k, 22, 23, 22, 23, 74)
    k.e(f"s_mul_i32 s74, s72, {256*12288*2}")
    k.e("s_lshl_b32 s75, s73, 9")
    k.e("s_add_u32 s74, s74, s75")
    k.e(f"s_add_u32 s74, s74, {QKVB_OFF}")
    add64(k, 24, 25, 64, 65, 74)
    k.e("s_mov_b32 s26, 2048")
    k.e("s_mov_b32 s27, 8192")
    k.e("s_mov_b32 s28, 24576")
    k.e("s_mov_b32 s29, 16")
    k.label(ld)


XB_OFF = HAND_OFF
PART_OFF = XB_OFF + 2 * 32 * 12288
MEMX_OFF = PART_OFF + 2 * 32 * 256 * 256
HAND_END = MEMX_OFF + 2 * 32768
POLL_MAX = 400000
import os
REC_STOP = int(os.environ.get('REC_STOP', '63'))
SCF = os.environ.get('SCF', 'sc0 sc1')
SLEEP = int(os.environ.get('SLEEP', '0'))


def rec_kernel(name):
    k = K(name)
    WQ = 4
    WO = 100
    MF = 132
    ACC = 196
    PX = 208
    V = 224
    vL, vM, vG = V, V + 1, V + 2
    vT0, vT1, vT2, vT3 = V + 3, V + 4, V + 5, V + 6
    vMemOff = V + 7
    vXBst = V + 8
    vXBld = V + 9
    vLdsXw = V + 10
    vKrd = V + 11
    vQrd = V + 12
    vVrd = V + 13
    vOwr = V + 14
    vOrd = V + 15
    vPst = V + 16
    vPld = V + 17
    vMXst = V + 18
    vKVst = V + 19
    vRedW = V + 20
    vPXg = V + 21
    vPXl = V + 22
    NV = V + 24
    RS = 272
    KL = 0
    VL = KL + 48 * RS
    QL = VL + 48 * RS
    OL = QL + 16 * RS
    RED = OL + 16 * RS
    LDS_BYTES = RED + 12288
    end = f"{name}_end"
    k.e("s_cmp_ge_u32 s2, 256")
    k.e(f"s_cbranch_scc1 {end}")
    k.e("s_load_dwordx16 s[40:55], s[0:1], 0")
    k.e("s_load_dwordx8 s[56:63], s[0:1], 64")
    k.e("s_load_dwordx2 s[64:65], s[0:1], 96")
    k.e(f"v_and_b32 v{vL}, 63, v0")
    k.e(f"v_lshrrev_b32 v{vT0}, 6, v0")
    k.e("s_nop 1")
    k.e(f"v_readfirstlane_b32 s3, v{vT0}")
    k.e(f"v_and_b32 v{vM}, 15, v{vL}")
    k.e(f"v_lshrrev_b32 v{vG}, 4, v{vL}")
    k.e("s_lshr_b32 s20, s2, 3")
    k.e("s_and_b32 s21, s2, 7")
    k.e("s_waitcnt lgkmcnt(0)")
    srd(k, 4, 64, 65, "0x10000000")
    k.e("s_lshl_b32 s24, s20, 7")
    k.e("s_lshl_b32 s25, s21, 4")
    k.e("s_add_u32 s24, s24, s25")
    k.e(f"v_add_u32 v{vT0}, s24, v{vM}")
    k.e(f"v_lshlrev_b32 v{vT0}, 1, v{vT0}")
    k.e(f"v_lshl_add_u32 v{vT0}, v{vG}, 16, v{vT0}")
    k.e("s_lshl_b32 s26, s3, 21")
    for t in range(3):
        srd(k, 8, 50 + 2 * t, 51 + 2 * t, "0x800000")
        k.e("s_mov_b32 s27, s26")
        for ks in range(8):
            for i in range(8):
                k.e(f"buffer_load_ushort v{MF+8*(ks%4)+i}, v{vT0}, s[8:11], s27 offen")
                k.e("s_add_u32 s27, s27, 8192")
            k.e("s_add_u32 s27, s27, 196608")
            if ks % 4 == 3:
                k.e("s_waitcnt vmcnt(0)")
                for k2 in range(4):
                    for i2 in range(4):
                        r = WQ + ((ks - 3 + k2) * 3 + t) * 4 + i2
                        k.e(f"v_lshl_or_b32 v{r}, v{MF+8*k2+2*i2+1}, 16, v{MF+8*k2+2*i2}")
    srd(k, 8, 56, 57, "0x800000")
    k.e("s_lshl_b32 s24, s21, 7")
    k.e("s_lshl_b32 s25, s3, 5")
    k.e("s_add_u32 s24, s24, s25")
    k.e(f"v_add_u32 v{vT0}, s24, v{vM}")
    k.e(f"v_lshlrev_b32 v{vT0}, 1, v{vT0}")
    k.e(f"v_lshl_add_u32 v{vT0}, v{vG}, 14, v{vT0}")
    k.e("s_lshl_b32 s26, s20, 18")
    for u in range(2):
        k.e("s_mov_b32 s27, s26")
        for ks in range(4):
            for i in range(8):
                k.e(f"buffer_load_ushort v{MF+8*ks+i}, v{vT0}, s[8:11], s27 offen offset:{32*u}")
                k.e("s_add_u32 s27, s27, 2048")
            k.e("s_add_u32 s27, s27, 49152")
        k.e("s_waitcnt vmcnt(0)")
        for ks in range(4):
            for i2 in range(4):
                r = WO + (u * 4 + ks) * 4 + i2
                k.e(f"v_lshl_or_b32 v{r}, v{MF+8*ks+2*i2+1}, 16, v{MF+8*ks+2*i2}")
    k.e(f"v_and_b32 v{vT0}, 7, v{vL}")
    k.e(f"v_lshl_add_u32 v{vT1}, v{vG}, 3, v{vT0}")
    k.e(f"v_lshlrev_b32 v{vT1}, 5, v{vT1}")
    k.e("s_lshl_b32 s24, s3, 13")
    k.e(f"v_add_u32 v{vMemOff}, s24, v{vT1}")
    k.e("s_mul_i32 s24, s20, 3")
    k.e("s_add_u32 s24, s24, s3")
    k.e("s_lshl_b32 s24, s24, 12")
    k.e("s_lshl_b32 s25, s21, 6")
    k.e("s_add_u32 s24, s24, s25")
    k.e(f"v_lshlrev_b32 v{vT1}, 9, v{vT0}")
    k.e(f"v_lshl_add_u32 v{vT1}, v{vG}, 4, v{vT1}")
    k.e(f"v_add_u32 v{vXBst}, s24, v{vT1}")
    k.e("s_mul_i32 s24, s20, 12288")
    k.e("s_mul_i32 s25, s3, 3072")
    k.e("s_add_u32 s24, s24, s25")
    k.e(f"v_lshlrev_b32 v{vT1}, 4, v{vL}")
    k.e(f"v_add_u32 v{vXBld}, s24, v{vT1}")
    k.e("s_lshl_b32 s24, s20, 8")
    k.e("s_lshl_b32 s25, s21, 5")
    k.e("s_add_u32 s24, s24, s25")
    k.e("s_sub_u32 s25, s3, 1")
    k.e("s_lshl_b32 s25, s25, 13")
    k.e("s_add_u32 s24, s24, s25")
    k.e(f"v_lshlrev_b32 v{vT1}, 14, v{vT0}")
    k.e(f"v_lshl_add_u32 v{vT1}, v{vG}, 3, v{vT1}")
    k.e(f"v_add_u32 v{vKVst}, s24, v{vT1}")
    k.e("s_mul_i32 s24, s3, 3072")
    k.e(f"v_lshlrev_b32 v{vT1}, 4, v{vL}")
    k.e(f"v_add_u32 v{vT1}, s24, v{vT1}")
    k.e(f"v_add_u32 v{vRedW}, {RED}, v{vT1}")
    k.e(f"v_lshrrev_b32 v{vT1}, 5, v{vL}")
    k.e(f"v_mul_u32_u24 v{vT1}, {RS}, v{vT1}")
    k.e(f"v_and_b32 v{vT2}, 31, v{vL}")
    k.e(f"v_lshl_add_u32 v{vLdsXw}, v{vT2}, 3, v{vT1}")
    k.e(f"v_mul_u32_u24 v{vT1}, {RS}, v{vM}")
    k.e(f"v_lshl_add_u32 v{vKrd}, v{vG}, 4, v{vT1}")
    k.e(f"v_lshrrev_b32 v{vT1}, 2, v{vM}")
    k.e(f"v_lshl_add_u32 v{vT1}, v{vG}, 2, v{vT1}")
    k.e(f"v_mul_u32_u24 v{vT1}, {RS}, v{vT1}")
    k.e(f"v_and_b32 v{vT2}, 3, v{vL}")
    k.e(f"v_lshl_add_u32 v{vT1}, v{vT2}, 3, v{vT1}")
    k.e("s_lshl_b32 s24, s3, 6")
    k.e(f"v_add_u32 v{vT1}, s24, v{vT1}")
    k.e(f"v_add_u32 v{vVrd}, {VL}, v{vT1}")
    k.e(f"v_mul_u32_u24 v{vT1}, {RS}, v{vM}")
    k.e(f"v_lshl_add_u32 v{vT1}, v{vG}, 3, v{vT1}")
    k.e(f"v_add_u32 v{vT1}, s24, v{vT1}")
    k.e(f"v_add_u32 v{vOwr}, {OL}, v{vT1}")
    k.e("s_lshl_b32 s24, s20, 16")
    k.e("s_lshl_b32 s25, s21, 13")
    k.e("s_add_u32 s24, s24, s25")
    k.e("s_lshl_b32 s25, s3, 11")
    k.e("s_add_u32 s24, s24, s25")
    k.e(f"v_lshl_add_u32 v{vT1}, v{vG}, 3, v{vT0}")
    k.e(f"v_lshlrev_b32 v{vT1}, 5, v{vT1}")
    k.e(f"v_add_u32 v{vPst}, s24, v{vT1}")
    k.e("s_lshl_b32 s24, s2, 8")
    k.e(f"v_lshlrev_b32 v{vT1}, 16, v{vG}")
    k.e(f"v_lshl_add_u32 v{vT1}, v{vM}, 4, v{vT1}")
    k.e(f"v_add_u32 v{vPld}, s24, v{vT1}")
    k.e("s_lshr_b32 s24, s2, 1")
    k.e("s_lshl_b32 s24, s24, 8")
    k.e("s_and_b32 s25, s2, 1")
    k.e("s_lshl_b32 s25, s25, 4")
    k.e("s_add_u32 s24, s24, s25")
    k.e(f"v_lshrrev_b32 v{vT1}, 1, v{vM}")
    k.e(f"v_lshlrev_b32 v{vT1}, 5, v{vT1}")
    k.e(f"v_and_b32 v{vT2}, 1, v{vM}")
    k.e(f"v_lshl_add_u32 v{vT1}, v{vT2}, 3, v{vT1}")
    k.e(f"v_add_u32 v{vMXst}, s24, v{vT1}")
    k.e(f"v_lshrrev_b32 v{vT1}, 3, v0")
    k.e("s_mov_b32 s24, 24576")
    k.e(f"v_mul_lo_u32 v{vT2}, v{vT1}, s24")
    k.e(f"v_and_b32 v{vT3}, 7, v0")
    k.e(f"v_lshl_add_u32 v{vT2}, v{vT3}, 4, v{vT2}")
    k.e("s_lshl_b32 s24, s20, 8")
    k.e(f"s_add_u32 s24, s24, {QKVB_OFF + 8192}")
    k.e(f"v_add_u32 v{vPXg}, s24, v{vT2}")
    k.e(f"v_mul_u32_u24 v{vT2}, {RS}, v{vT1}")
    k.e(f"v_lshl_add_u32 v{vPXl}, v{vT3}, 4, v{vT2}")
    k.e(f"v_mov_b32 v{MF}, 0")
    k.e(f"v_mov_b32 v{MF+1}, 0")
    k.e(f"v_mov_b32 v{MF+2}, 0")
    k.e(f"v_mov_b32 v{MF+3}, 0")
    k.e(f"v_lshlrev_b32 v{vT1}, 4, v0")
    for i in range((RED + 4095) // 4096):
        k.e(f"ds_write_b128 v{vT1}, v[{MF}:{MF+3}] offset:{i*4096}")
    k.e("s_waitcnt lgkmcnt(0)")
    k.e("s_barrier")

    def stamp(idx):
        if not os.environ.get('REC_STAMP'):
            return
        lb = k.newlabel("st")
        k.e("s_or_b32 s34, s2, s3")
        k.e("s_cmp_lg_u32 s34, 0")
        k.e(f"s_cbranch_scc1 {lb}")
        k.e("s_cmp_lg_u32 s22, 10")
        k.e(f"s_cbranch_scc1 {lb}")
        k.e("s_memtime s[36:37]")
        k.e("s_waitcnt lgkmcnt(0)")
        k.e(f"v_mov_b32 v{vT3}, s36")
        srd(k, 68, 62, 63, "256")
        k.e(f"v_mov_b32 v{vT2}, {4*idx}")
        k.e(f"buffer_store_dword v{vT3}, v{vT2}, s[68:71], 0 offen")
        k.label(lb)

    def prefetch_x(sreg_seg):
        k.e(f"s_mul_i32 s28, s{sreg_seg}, {32*24576}")
        for c in range(2):
            k.e(f"buffer_load_dwordx4 v[{PX+4*c}:{PX+4*c+3}], v{vPXg}, s[4:7], s28 offen offset:{128*c}")
        k.e("s_add_u32 s28, s28, 8192")
        for c in range(2):
            k.e(f"buffer_load_dwordx4 v[{PX+8+4*c}:{PX+8+4*c+3}], v{vPXg}, s[4:7], s28 offen offset:{128*c}")

    k.e("s_mov_b32 s22, 0")
    prefetch_x(22)
    step = k.newlabel("step")
    k.label(step)
    stamp(0)
    k.e("s_add_u32 s23, s22, 1")
    k.e("s_and_b32 s29, s22, 1")
    have = k.newlabel("havemem")
    k.e("s_cmp_lg_u32 s22, 0")
    k.e(f"s_cbranch_scc1 {name}_poll_mem")
    srd(k, 8, 48, 49, "0x4000")
    k.e(f"v_and_b32 v{vT0}, 7, v{vL}")
    k.e(f"v_lshlrev_b32 v{vT0}, 11, v{vT0}")
    k.e(f"v_lshl_add_u32 v{vT0}, v{vG}, 4, v{vT0}")
    k.e("s_lshl_b32 s24, s3, 9")
    for ks in range(8):
        k.e(f"buffer_load_dwordx4 v[{MF+4*ks}:{MF+4*ks+3}], v{vT0}, s[8:11], s24 offen offset:{64*ks}")
    k.e("s_waitcnt vmcnt(0)")
    k.e(f"s_branch {have}")
    k.label(f"{name}_poll_mem")
    k.e(f"s_lshl_b32 s24, s29, 15")
    k.e(f"s_add_u32 s24, s24, {MEMX_OFF}")
    k.e(f"s_mov_b32 s30, 0")
    pp = k.newlabel("prepoll")
    k.label(pp)
    k.e("s_add_u32 s25, s24, 4096")
    k.e(f"buffer_load_dwordx4 v[{MF}:{MF+3}], v{vMemOff}, s[4:7], s25 offen offset:{3072+16} {SCF}")
    k.e("s_waitcnt vmcnt(0)")
    k.e(f"v_xor_b32 v{vT0}, s22, v{MF+1}")
    k.e(f"v_cmp_ne_u32 vcc, 0, v{vT0}")
    k.e("s_add_u32 s30, s30, 1")
    k.e(f"s_cmp_ge_u32 s30, {POLL_MAX}")
    k.e(f"s_cbranch_scc1 {end}")
    k.e(f"s_cbranch_vccnz {pp}")
    pl = k.newlabel("pollmem")
    k.label(pl)
    k.e("s_add_u32 s25, s24, 4096")
    for ks in range(8):
        for hh in range(2):
            k.e(f"buffer_load_dwordx4 v[{MF+8*ks+4*hh}:{MF+8*ks+4*hh+3}], v{vMemOff}, s[4:7], s{24 if ks < 4 else 25} offen offset:{1024*(ks%4)+16*hh} {SCF}")
    k.e("s_waitcnt vmcnt(0)")
    k.e(f"v_xor_b32 v{vT0}, s22, v{MF+1}")
    k.e(f"v_xor_b32 v{vT1}, s22, v{MF+3}")
    for q in range(1, 16):
        k.e(f"v_xor_b32 v{vT2}, s22, v{MF+4*q+1}")
        k.e(f"v_xor_b32 v{vT3}, s22, v{MF+4*q+3}")
        k.e(f"v_or3_b32 v{vT0}, v{vT0}, v{vT2}, v{vT3}")
    k.e(f"v_or_b32 v{vT0}, v{vT0}, v{vT1}")
    k.e(f"v_cmp_ne_u32 vcc, 0, v{vT0}")
    k.e("s_add_u32 s30, s30, 1")
    k.e(f"s_cmp_ge_u32 s30, {POLL_MAX}")
    k.e(f"s_cbranch_scc1 {end}")
    okl = k.newlabel("ok")
    k.e(f"s_cbranch_vccz {okl}")
    if SLEEP:
        k.e(f"s_sleep {SLEEP}")
    k.e(f"s_branch {pl}")
    k.label(okl)
    for ks in range(8):
        b = MF + 8 * ks
        d = MF + 4 * ks
        k.e(f"v_mov_b32 v{d}, v{b}")
        k.e(f"v_mov_b32 v{d+1}, v{b+2}")
        k.e(f"v_mov_b32 v{d+2}, v{b+4}")
        k.e(f"v_mov_b32 v{d+3}, v{b+6}")
    k.label(have)
    k.e("s_waitcnt vmcnt(0)")
    for c in range(2):
        k.e(f"ds_write_b128 v{vPXl}, v[{PX+4*c}:{PX+4*c+3}] offset:{KL+128*c}")
        k.e(f"ds_write_b128 v{vPXl}, v[{PX+8+4*c}:{PX+8+4*c+3}] offset:{VL+128*c}")
    stamp(1)
    for t in range(3):
        for i in range(4):
            k.e(f"v_mov_b32 v{ACC+4*t+i}, 0")
    k.e("s_nop 1")
    for ks in range(8):
        for t in range(3):
            w = WQ + (ks * 3 + t) * 4
            k.e(f"v_mfma_f32_16x16x32_bf16 v[{ACC+4*t}:{ACC+4*t+3}], v[{w}:{w+3}], v[{MF+4*ks}:{MF+4*ks+3}], v[{ACC+4*t}:{ACC+4*t+3}]")
    k.e("s_nop 7")
    k.e("s_nop 3")
    for t in range(3):
        k.e(f"ds_write_b128 v{vRedW}, v[{ACC+4*t}:{ACC+4*t+3}] offset:{1024*t}")
    k.e("s_waitcnt lgkmcnt(0)")
    k.e("s_barrier")
    stamp(2)
    nopub = k.newlabel("nopub")
    k.e("s_cmp_ge_u32 s3, 3")
    k.e(f"s_cbranch_scc1 {nopub}")
    k.e("s_lshl_b32 s24, s3, 10")
    k.e(f"v_lshlrev_b32 v{vT0}, 4, v{vL}")
    k.e(f"v_add_u32 v{vT0}, s24, v{vT0}")
    for w in range(4):
        k.e(f"ds_read_b128 v[{MF+4*w}:{MF+4*w+3}], v{vT0} offset:{RED + 3072*w}")
    k.e("s_waitcnt lgkmcnt(0)")
    for i in range(4):
        k.e(f"v_add_f32 v{MF+i}, v{MF+i}, v{MF+4+i}")
        k.e(f"v_add_f32 v{MF+8+i}, v{MF+8+i}, v{MF+12+i}")
    for i in range(4):
        k.e(f"v_add_f32 v{MF+i}, v{MF+i}, v{MF+8+i}")
    k.e(f"v_cvt_pk_bf16_f32 v{MF+16}, v{MF}, v{MF+1}")
    k.e(f"v_cvt_pk_bf16_f32 v{MF+18}, v{MF+2}, v{MF+3}")
    k.e(f"v_mov_b32 v{MF+17}, s23")
    k.e(f"v_mov_b32 v{MF+19}, s23")
    k.e(f"s_mul_i32 s24, s29, {32*12288}")
    k.e(f"s_add_u32 s24, s24, {XB_OFF}")
    k.e(f"buffer_store_dwordx4 v[{MF+16}:{MF+19}], v{vXBst}, s[4:7], s24 offen {SCF}")
    nokv = k.newlabel("nokv")
    k.e("s_cmp_eq_u32 s3, 0")
    k.e(f"s_cbranch_scc1 {nokv}")
    k.e(f"v_mov_b32 v{MF+17}, v{MF+18}")
    k.e(f"s_lshl_b32 s24, s22, 17")
    k.e(f"s_add_u32 s24, s24, {MEMKV_OFF}")
    k.e(f"buffer_store_dwordx2 v[{MF+16}:{MF+17}], v{vKVst}, s[4:7], s24 offen")
    k.label(nokv)
    k.label(nopub)
    k.e(f"s_cmp_eq_u32 s22, {REC_STOP}")
    k.e(f"s_cbranch_scc1 {end}")
    stamp(3)
    k.e(f"s_mul_i32 s24, s29, {32*12288}")
    k.e(f"s_add_u32 s24, s24, {XB_OFF}")
    k.e("s_mov_b32 s30, 0")
    pl = k.newlabel("pollx")
    k.label(pl)
    for qq in range(3):
        k.e(f"buffer_load_dwordx4 v[{MF+4*qq}:{MF+4*qq+3}], v{vXBld}, s[4:7], s24 offen offset:{1024*qq} {SCF}")
    k.e("s_waitcnt vmcnt(0)")
    k.e(f"v_xor_b32 v{vT0}, s23, v{MF+1}")
    k.e(f"v_xor_b32 v{vT1}, s23, v{MF+3}")
    for qq in range(1, 3):
        k.e(f"v_xor_b32 v{vT2}, s23, v{MF+4*qq+1}")
        k.e(f"v_xor_b32 v{vT3}, s23, v{MF+4*qq+3}")
        k.e(f"v_or3_b32 v{vT0}, v{vT0}, v{vT2}, v{vT3}")
    k.e(f"v_or_b32 v{vT0}, v{vT0}, v{vT1}")
    k.e(f"v_cmp_ne_u32 vcc, 0, v{vT0}")
    k.e("s_add_u32 s30, s30, 1")
    k.e(f"s_cmp_ge_u32 s30, {POLL_MAX}")
    k.e(f"s_cbranch_scc1 {end}")
    okl = k.newlabel("ok")
    k.e(f"s_cbranch_vccz {okl}")
    if SLEEP:
        k.e(f"s_sleep {SLEEP}")
    k.e(f"s_branch {pl}")
    k.label(okl)
    for qq in range(3):
        k.e(f"v_mov_b32 v{MF+4*qq+1}, v{MF+4*qq+2}")
    for qq in range(3):
        k.e(f"s_mul_i32 s24, s3, 3")
        k.e(f"s_add_u32 s24, s24, {qq}")
        k.e("s_lshr_b32 s25, s24, 2")
        k.e("s_and_b32 s24, s24, 3")
        k.e(f"s_mul_i32 s24, s24, {2*RS}")
        k.e(f"s_mov_b32 s26, {QL}")
        k.e("s_cmp_eq_u32 s25, 1")
        k.e(f"s_cselect_b32 s26, {KL+32*RS}, s26")
        k.e("s_cmp_eq_u32 s25, 2")
        k.e(f"s_cselect_b32 s26, {VL+32*RS}, s26")
        k.e("s_add_u32 s24, s24, s26")
        k.e(f"v_add_u32 v{vT0}, s24, v{vLdsXw}")
        k.e(f"ds_write_b64 v{vT0}, v[{MF+4*qq}:{MF+4*qq+1}]")
    k.e("s_waitcnt lgkmcnt(0)")
    k.e("s_barrier")
    k.e("s_add_u32 s31, s22, 1")
    prefetch_x(31)
    stamp(4)
    SC = MF
    KF = MF + 12
    QF = MF + 28
    for ks in range(4):
        k.e(f"ds_read_b128 v[{QF+4*ks}:{QF+4*ks+3}], v{vKrd} offset:{QL+64*ks}")
    for T in range(3):
        for i in range(4):
            k.e(f"v_mov_b32 v{SC+4*T+i}, 0")
    for T in range(3):
        for ks in range(4):
            k.e(f"ds_read_b128 v[{KF+4*ks}:{KF+4*ks+3}], v{vKrd} offset:{KL+16*T*RS+64*ks}")
        k.e("s_waitcnt lgkmcnt(0)")
        for ks in range(4):
            k.e(f"v_mfma_f32_16x16x32_bf16 v[{SC+4*T}:{SC+4*T+3}], v[{KF+4*ks}:{KF+4*ks+3}], v[{QF+4*ks}:{QF+4*ks+3}], v[{SC+4*T}:{SC+4*T+3}]")
    k.e("s_nop 7")
    k.e("s_nop 3")
    k.e("s_mov_b32 s24, 0x3db504f3")
    for q in range(12):
        k.e(f"v_cvt_pk_bf16_f32 v{SC+q}, v{SC+q}, v{SC+q}")
        k.e(f"v_lshlrev_b32 v{SC+q}, 16, v{SC+q}")
        k.e(f"v_mul_f32 v{SC+q}, s24, v{SC+q}")
        k.e(f"v_cvt_pk_bf16_f32 v{SC+q}, v{SC+q}, v{SC+q}")
        k.e(f"v_lshlrev_b32 v{SC+q}, 16, v{SC+q}")
    k.e(f"v_cmp_le_u32 vcc, 2, v{vG}")
    k.e("s_mov_b32 s24, 0xf149f2ca")
    for i in range(4):
        k.e(f"v_mov_b32 v{vT0}, s24")
        k.e(f"v_cndmask_b32 v{SC+8+i}, v{SC+8+i}, v{vT0}, vcc")
    k.e(f"v_max3_f32 v{vT0}, v{SC}, v{SC+1}, v{SC+2}")
    for q in range(3, 12, 2):
        if q + 1 < 12:
            k.e(f"v_max3_f32 v{vT0}, v{vT0}, v{SC+q}, v{SC+q+1}")
        else:
            k.e(f"v_max_f32 v{vT0}, v{vT0}, v{SC+q}")
    for x in (16, 32):
        k.e(f"v_xor_b32 v{vT1}, {x}, v{vL}")
        k.e(f"v_lshlrev_b32 v{vT1}, 2, v{vT1}")
        k.e(f"ds_bpermute_b32 v{vT2}, v{vT1}, v{vT0}")
        k.e("s_waitcnt lgkmcnt(0)")
        k.e(f"v_max_f32 v{vT0}, v{vT0}, v{vT2}")
    k.e("s_mov_b32 s24, 0x3fb8aa3b")
    for q in range(12):
        k.e(f"v_sub_f32 v{SC+q}, v{SC+q}, v{vT0}")
        k.e(f"v_mul_f32 v{SC+q}, s24, v{SC+q}")
        k.e(f"v_exp_f32 v{SC+q}, v{SC+q}")
    k.e("s_nop 0")
    k.e(f"v_add_f32 v{vT0}, v{SC}, v{SC+1}")
    for q in range(2, 12):
        k.e(f"v_add_f32 v{vT0}, v{vT0}, v{SC+q}")
    for x in (16, 32):
        k.e(f"v_xor_b32 v{vT1}, {x}, v{vL}")
        k.e(f"v_lshlrev_b32 v{vT1}, 2, v{vT1}")
        k.e(f"ds_bpermute_b32 v{vT2}, v{vT1}, v{vT0}")
        k.e("s_waitcnt lgkmcnt(0)")
        k.e(f"v_add_f32 v{vT0}, v{vT0}, v{vT2}")
    k.e(f"v_rcp_f32 v{vT0}, v{vT0}")
    k.e("s_nop 0")
    for q in range(12):
        k.e(f"v_mul_f32 v{SC+q}, v{SC+q}, v{vT0}")
    PF = KF
    k.e(f"v_cvt_pk_bf16_f32 v{PF}, v{SC}, v{SC+1}")
    k.e(f"v_cvt_pk_bf16_f32 v{PF+1}, v{SC+2}, v{SC+3}")
    k.e(f"v_cvt_pk_bf16_f32 v{PF+2}, v{SC+4}, v{SC+5}")
    k.e(f"v_cvt_pk_bf16_f32 v{PF+3}, v{SC+6}, v{SC+7}")
    k.e(f"v_cvt_pk_bf16_f32 v{PF+4}, v{SC+8}, v{SC+9}")
    k.e(f"v_cvt_pk_bf16_f32 v{PF+5}, v{SC+10}, v{SC+11}")
    k.e(f"v_mov_b32 v{PF+6}, 0")
    k.e(f"v_mov_b32 v{PF+7}, 0")
    VF = QF
    OACC = SC
    for du in range(2):
        for i in range(4):
            k.e(f"v_mov_b32 v{OACC+4*du+i}, 0")
    for du in range(2):
        k.e(f"ds_read_b64_tr_b16 v[{VF}:{VF+1}], v{vVrd} offset:{32*du}")
        k.e(f"ds_read_b64_tr_b16 v[{VF+2}:{VF+3}], v{vVrd} offset:{32*du+16*RS}")
        k.e(f"ds_read_b64_tr_b16 v[{VF+4}:{VF+5}], v{vVrd} offset:{32*du+32*RS}")
        k.e(f"ds_read_b64_tr_b16 v[{VF+6}:{VF+7}], v{vVrd} offset:{32*du+32*RS}")
        k.e("s_waitcnt lgkmcnt(0)")
        k.e(f"v_mfma_f32_16x16x32_bf16 v[{OACC+4*du}:{OACC+4*du+3}], v[{VF}:{VF+3}], v[{PF}:{PF+3}], v[{OACC+4*du}:{OACC+4*du+3}]")
        k.e(f"v_mfma_f32_16x16x32_bf16 v[{OACC+4*du}:{OACC+4*du+3}], v[{VF+4}:{VF+7}], v[{PF+4}:{PF+7}], v[{OACC+4*du}:{OACC+4*du+3}]")
    k.e("s_nop 7")
    k.e("s_nop 3")
    for du in range(2):
        k.e(f"v_cvt_pk_bf16_f32 v{vT1}, v{OACC+4*du}, v{OACC+4*du+1}")
        k.e(f"v_cvt_pk_bf16_f32 v{vT2}, v{OACC+4*du+2}, v{OACC+4*du+3}")
        k.e(f"ds_write_b64 v{vOwr}, v[{vT1}:{vT2}] offset:{32*du}")
    k.e("s_waitcnt lgkmcnt(0)")
    k.e("s_barrier")
    if os.environ.get('REC_DUMP'):
        k.e(f"v_lshlrev_b32 v{vT1}, 4, v0")
        k.e("s_mul_i32 s24, s2, 65536")
        k.e(f"s_add_u32 s24, s24, {128*MiB}")
        for i in range(9):
            k.e(f"ds_read_b128 v[{MF+32}:{MF+35}], v{vT1} offset:{4096*i}")
            k.e("s_waitcnt lgkmcnt(0)")
            k.e(f"buffer_store_dwordx4 v[{MF+32}:{MF+35}], v{vT1}, s[4:7], s24 offen offset:0")
            k.e("s_add_u32 s24, s24, 4096")
            k.e("s_waitcnt vmcnt(0)")
        k.e(f"s_branch {end}")
    stamp(5)
    OF = MF + 32
    for ks in range(4):
        k.e(f"ds_read_b128 v[{OF+4*ks}:{OF+4*ks+3}], v{vKrd} offset:{OL+64*ks}")
    for u in range(2):
        for i in range(4):
            k.e(f"v_mov_b32 v{ACC+4*u+i}, 0")
    k.e("s_waitcnt lgkmcnt(0)")
    for u in range(2):
        for ks in range(4):
            w = WO + (u * 4 + ks) * 4
            k.e(f"v_mfma_f32_16x16x32_bf16 v[{ACC+4*u}:{ACC+4*u+3}], v[{w}:{w+3}], v[{OF+4*ks}:{OF+4*ks+3}], v[{ACC+4*u}:{ACC+4*u+3}]")
    k.e("s_nop 7")
    k.e("s_nop 3")
    k.e(f"s_mul_i32 s24, s29, {32*65536}")
    k.e(f"s_add_u32 s24, s24, {PART_OFF}")
    k.e(f"v_cmp_gt_u32 vcc, 8, v{vM}")
    k.e("s_and_saveexec_b64 s[32:33], vcc")
    for u in range(2):
        a = ACC + 4 * u
        k.e(f"v_mov_b32 v{MF}, v{a}")
        k.e(f"v_mov_b32 v{MF+1}, s23")
        k.e(f"v_mov_b32 v{MF+2}, v{a+1}")
        k.e(f"v_mov_b32 v{MF+3}, s23")
        k.e(f"v_mov_b32 v{MF+4}, v{a+2}")
        k.e(f"v_mov_b32 v{MF+5}, s23")
        k.e(f"v_mov_b32 v{MF+6}, v{a+3}")
        k.e(f"v_mov_b32 v{MF+7}, s23")
        k.e(f"buffer_store_dwordx4 v[{MF}:{MF+3}], v{vPst}, s[4:7], s24 offen offset:{1024*u} {SCF}")
        k.e(f"buffer_store_dwordx4 v[{MF+4}:{MF+7}], v{vPst}, s[4:7], s24 offen offset:{1024*u+16} {SCF}")
        k.e("s_nop 1")
    k.e("s_mov_b64 exec, s[32:33]")
    stamp(6)
    nored = k.newlabel("nored")
    k.e("s_cmp_lg_u32 s3, 0")
    k.e(f"s_cbranch_scc1 {nored}")
    k.e("s_mov_b32 s30, 0")
    pl = k.newlabel("pollp")
    k.label(pl)
    k.e("s_mov_b32 s25, s24")
    for m8 in range(8):
        k.e(f"buffer_load_dwordx4 v[{MF+4*m8}:{MF+4*m8+3}], v{vPld}, s[4:7], s25 offen {SCF}")
        k.e("s_add_u32 s25, s25, 262144")
    k.e("s_waitcnt vmcnt(0)")
    k.e(f"v_xor_b32 v{vT0}, s23, v{MF+1}")
    k.e(f"v_xor_b32 v{vT1}, s23, v{MF+3}")
    for q in range(1, 8):
        k.e(f"v_xor_b32 v{vT2}, s23, v{MF+4*q+1}")
        k.e(f"v_xor_b32 v{vT3}, s23, v{MF+4*q+3}")
        k.e(f"v_or3_b32 v{vT0}, v{vT0}, v{vT2}, v{vT3}")
    k.e(f"v_or_b32 v{vT0}, v{vT0}, v{vT1}")
    k.e(f"v_cmp_ne_u32 vcc, 0, v{vT0}")
    k.e("s_add_u32 s30, s30, 1")
    k.e(f"s_cmp_ge_u32 s30, {POLL_MAX}")
    k.e(f"s_cbranch_scc1 {end}")
    okl = k.newlabel("ok")
    k.e(f"s_cbranch_vccz {okl}")
    if SLEEP:
        k.e(f"s_sleep {SLEEP}")
    k.e(f"s_branch {pl}")
    k.label(okl)
    for q in range(1, 8):
        k.e(f"v_add_f32 v{MF}, v{MF}, v{MF+4*q}")
        k.e(f"v_add_f32 v{MF+2}, v{MF+2}, v{MF+4*q+2}")
    for x in (16, 32):
        k.e(f"v_xor_b32 v{vT1}, {x}, v{vL}")
        k.e(f"v_lshlrev_b32 v{vT1}, 2, v{vT1}")
        k.e(f"ds_bpermute_b32 v{vT2}, v{vT1}, v{MF}")
        k.e(f"ds_bpermute_b32 v{vT3}, v{vT1}, v{MF+2}")
        k.e("s_waitcnt lgkmcnt(0)")
        k.e(f"v_add_f32 v{MF}, v{MF}, v{vT2}")
        k.e(f"v_add_f32 v{MF+2}, v{MF+2}, v{vT3}")
    k.e(f"v_cvt_pk_bf16_f32 v{MF}, v{MF}, v{MF+2}")
    k.e(f"v_mov_b32 v{MF+1}, s23")
    k.e("s_xor_b32 s25, s29, 1")
    k.e("s_lshl_b32 s25, s25, 15")
    k.e(f"s_add_u32 s25, s25, {MEMX_OFF}")
    k.e(f"v_cmp_gt_u32 vcc, 16, v{vL}")
    k.e("s_and_saveexec_b64 s[32:33], vcc")
    k.e(f"buffer_store_dwordx2 v[{MF}:{MF+1}], v{vMXst}, s[4:7], s25 offen {SCF}")
    k.e("s_mov_b64 exec, s[32:33]")
    stamp(7)
    k.label(nored)
    k.e("s_barrier")
    k.e("s_add_u32 s22, s22, 1")
    k.e(f"s_branch {step}")
    k.label(end)
    return k, NV, LDS_BYTES


def clear_pre(k):
    n = (HAND_END - HAND_OFF + 16383) // 16384
    lb = k.newlabel("noclr")
    k.e(f"s_cmp_ge_u32 s2, {n}")
    k.e(f"s_cbranch_scc1 {lb}")
    srd(k, 4, 64, 65, "0x10000000")
    k.e("s_lshl_b32 s72, s2, 14")
    k.e(f"s_add_u32 s72, s72, {HAND_OFF}")
    k.e("v_lshlrev_b32 v1, 4, v0")
    k.e("v_mov_b32 v2, 0")
    k.e("v_mov_b32 v3, 0")
    k.e("v_mov_b32 v4, 0")
    k.e("v_mov_b32 v5, 0")
    k.e("buffer_store_dwordx4 v[2:5], v1, s[4:7], s72 offen")
    k.e("s_add_u32 s72, s72, 8192")
    k.e("buffer_store_dwordx4 v[2:5], v1, s[4:7], s72 offen")
    k.label(lb)


def softmax_tail(k, SC, n, vL, vT0, vT1, vT2):
    k.e(f"v_max3_f32 v{vT0}, v{SC}, v{SC+1}, v{SC+2}")
    q = 3
    while q < n:
        if q + 1 < n:
            k.e(f"v_max3_f32 v{vT0}, v{vT0}, v{SC+q}, v{SC+q+1}")
            q += 2
        else:
            k.e(f"v_max_f32 v{vT0}, v{vT0}, v{SC+q}")
            q += 1
    for x in (16, 32):
        k.e(f"v_xor_b32 v{vT1}, {x}, v{vL}")
        k.e(f"v_lshlrev_b32 v{vT1}, 2, v{vT1}")
        k.e(f"ds_bpermute_b32 v{vT2}, v{vT1}, v{vT0}")
        k.e("s_waitcnt lgkmcnt(0)")
        k.e(f"v_max_f32 v{vT0}, v{vT0}, v{vT2}")
    k.e("s_mov_b32 s24, 0x3fb8aa3b")
    for q in range(n):
        k.e(f"v_sub_f32 v{SC+q}, v{SC+q}, v{vT0}")
        k.e(f"v_mul_f32 v{SC+q}, s24, v{SC+q}")
        k.e(f"v_exp_f32 v{SC+q}, v{SC+q}")
    k.e("s_nop 0")
    k.e(f"v_add_f32 v{vT0}, v{SC}, v{SC+1}")
    for q in range(2, n):
        k.e(f"v_add_f32 v{vT0}, v{vT0}, v{SC+q}")
    for x in (16, 32):
        k.e(f"v_xor_b32 v{vT1}, {x}, v{vL}")
        k.e(f"v_lshlrev_b32 v{vT1}, 2, v{vT1}")
        k.e(f"ds_bpermute_b32 v{vT2}, v{vT1}, v{vT0}")
        k.e("s_waitcnt lgkmcnt(0)")
        k.e(f"v_add_f32 v{vT0}, v{vT0}, v{vT2}")
    k.e(f"v_rcp_f32 v{vT0}, v{vT0}")
    k.e("s_nop 0")
    for q in range(n):
        k.e(f"v_mul_f32 v{SC+q}, v{SC+q}, v{vT0}")


def round_scale(k, SC, n, scale_hex):
    k.e(f"s_mov_b32 s24, {scale_hex}")
    for q in range(n):
        k.e(f"v_cvt_pk_bf16_f32 v{SC+q}, v{SC+q}, v{SC+q}")
        k.e(f"v_lshlrev_b32 v{SC+q}, 16, v{SC+q}")
        k.e(f"v_mul_f32 v{SC+q}, s24, v{SC+q}")
        k.e(f"v_cvt_pk_bf16_f32 v{SC+q}, v{SC+q}, v{SC+q}")
        k.e(f"v_lshlrev_b32 v{SC+q}, 16, v{SC+q}")


def attnB_kernel(name):
    k = K(name)
    RS = 272
    vL, vM, vG, vT0, vT1, vT2, vT3 = 1, 2, 3, 4, 6, 7, 8
    vA0, vA1, vVrd, vVw = 9, 10, 11, 12
    QF = 16
    KF = 48
    SC = 64
    PF = 76
    VF = 92
    OA = 100
    NV = 108
    end = f"{name}_end"
    k.e("s_cmp_ge_u32 s2, 512")
    k.e(f"s_cbranch_scc1 {end}")
    k.e("s_load_dwordx2 s[64:65], s[0:1], 96")
    k.e(f"v_and_b32 v{vL}, 63, v0")
    k.e(f"v_lshrrev_b32 v{vT0}, 6, v0")
    k.e("s_nop 1")
    k.e(f"v_readfirstlane_b32 s3, v{vT0}")
    k.e(f"v_and_b32 v{vM}, 15, v{vL}")
    k.e(f"v_lshrrev_b32 v{vG}, 4, v{vL}")
    k.e("s_lshr_b32 s20, s2, 3")
    k.e("s_and_b32 s21, s2, 7")
    k.e("s_lshl_b32 s21, s21, 2")
    k.e("s_add_u32 s21, s21, s3")
    k.e("s_waitcnt lgkmcnt(0)")
    srd(k, 4, 64, 65, "0x10000000")
    k.e("s_mov_b32 s24, 24576")
    k.e(f"v_mul_lo_u32 v{vA0}, v{vM}, s24")
    k.e(f"v_lshl_add_u32 v{vA0}, v{vG}, 4, v{vA0}")
    k.e(f"s_mul_i32 s25, s20, {32*24576}")
    k.e("s_lshl_b32 s26, s21, 8")
    k.e("s_add_u32 s25, s25, s26")
    k.e(f"s_add_u32 s25, s25, {QKVB_OFF}")
    for qt in range(2):
        k.e(f"s_add_u32 s27, s25, {qt*16*24576}")
        for ks in range(4):
            k.e(f"buffer_load_dwordx4 v[{QF+16*qt+4*ks}:{QF+16*qt+4*ks+3}], v{vA0}, s[4:7], s27 offen offset:{64*ks}")
    k.e(f"s_mul_i32 s28, s3, {48*RS}")
    k.e(f"v_lshrrev_b32 v{vT0}, 4, v{vL}")
    k.e(f"v_mul_lo_u32 v{vT1}, v{vT0}, s24")
    k.e(f"v_lshl_add_u32 v{vT1}, v{vM}, 4, v{vT1}")
    k.e(f"v_mul_u32_u24 v{vVw}, {RS}, v{vT0}")
    k.e(f"v_lshl_add_u32 v{vVw}, v{vM}, 4, v{vVw}")
    k.e(f"v_add_u32 v{vVw}, s28, v{vVw}")
    k.e(f"s_add_u32 s27, s25, 16384")
    for i in range(8):
        k.e(f"buffer_load_dwordx4 v[{KF+4*(i%4)}:{KF+4*(i%4)+3}], v{vT1}, s[4:7], s27 offen")
        k.e(f"s_add_u32 s27, s27, {4*24576}")
        if i % 4 == 3:
            k.e("s_waitcnt vmcnt(0)")
            for i2 in range(4):
                k.e(f"ds_write_b128 v{vVw}, v[{KF+4*i2}:{KF+4*i2+3}] offset:{(i-3+i2)*4*RS}")
    k.e(f"v_lshlrev_b32 v{vT2}, 14, v{vT0}")
    k.e(f"v_lshl_add_u32 v{vT2}, v{vM}, 4, v{vT2}")
    k.e("s_lshl_b32 s27, s20, 17")
    k.e("s_add_u32 s27, s27, s26")
    k.e(f"s_add_u32 s29, s27, {MEMKV_OFF}")
    k.e("s_add_u32 s27, s29, 8192")
    for i in range(2):
        k.e(f"buffer_load_dwordx4 v[{KF+4*i}:{KF+4*i+3}], v{vT2}, s[4:7], s27 offen")
        k.e("s_add_u32 s27, s27, 65536")
    for i in range(4):
        k.e(f"v_mov_b32 v{KF+8+i}, 0")
    k.e("s_waitcnt vmcnt(0)")
    for i in range(2):
        k.e(f"ds_write_b128 v{vVw}, v[{KF+4*i}:{KF+4*i+3}] offset:{(32+4*i)*RS}")
    for i in range(2):
        k.e(f"ds_write_b128 v{vVw}, v[{KF+8}:{KF+11}] offset:{(40+4*i)*RS}")
    k.e(f"v_lshrrev_b32 v{vT0}, 2, v{vM}")
    k.e(f"v_lshl_add_u32 v{vT0}, v{vG}, 2, v{vT0}")
    k.e(f"v_mul_u32_u24 v{vT0}, {RS}, v{vT0}")
    k.e(f"v_and_b32 v{vT1}, 3, v{vL}")
    k.e(f"v_lshl_add_u32 v{vT0}, v{vT1}, 3, v{vT0}")
    k.e(f"v_add_u32 v{vVrd}, s28, v{vT0}")
    k.e(f"v_and_b32 v{vT0}, 7, v{vM}")
    k.e(f"v_lshlrev_b32 v{vT0}, 14, v{vT0}")
    k.e(f"v_lshl_add_u32 v{vA1}, v{vG}, 4, v{vT0}")
    for qt in range(2):
        for T in range(3):
            for i in range(4):
                k.e(f"v_mov_b32 v{SC+4*T+i}, 0")
        for T in range(3):
            if T < 2:
                k.e(f"s_add_u32 s27, s25, {8192 + T*16*24576}")
                for ks in range(4):
                    k.e(f"buffer_load_dwordx4 v[{KF+4*ks}:{KF+4*ks+3}], v{vA0}, s[4:7], s27 offen offset:{64*ks}")
            else:
                for ks in range(4):
                    k.e(f"buffer_load_dwordx4 v[{KF+4*ks}:{KF+4*ks+3}], v{vA1}, s[4:7], s29 offen offset:{64*ks}")
            k.e("s_waitcnt vmcnt(0)")
            for ks in range(4):
                k.e(f"v_mfma_f32_16x16x32_bf16 v[{SC+4*T}:{SC+4*T+3}], v[{KF+4*ks}:{KF+4*ks+3}], v[{QF+16*qt+4*ks}:{QF+16*qt+4*ks+3}], v[{SC+4*T}:{SC+4*T+3}]")
        k.e("s_nop 7")
        k.e("s_nop 3")
        round_scale(k, SC, 12, "0x3db504f3")
        k.e("s_mov_b32 s24, 0xf149f2ca")
        for T in range(2):
            for r in range(4):
                k.e(f"v_lshl_add_u32 v{vT0}, v{vG}, 2, {16*T + r - 16*qt}")
                k.e(f"v_cmp_gt_i32 vcc, v{vT0}, v{vM}")
                k.e(f"v_mov_b32 v{vT1}, s24")
                k.e(f"v_cndmask_b32 v{SC+4*T+r}, v{SC+4*T+r}, v{vT1}, vcc")
        k.e(f"v_cmp_le_u32 vcc, 2, v{vG}")
        k.e(f"v_mov_b32 v{vT1}, s24")
        for r in range(4):
            k.e(f"v_cndmask_b32 v{SC+8+r}, v{SC+8+r}, v{vT1}, vcc")
        softmax_tail(k, SC, 12, vL, vT0, vT1, vT2)
        P = PF + 8 * qt
        for i in range(6):
            k.e(f"v_cvt_pk_bf16_f32 v{P+i}, v{SC+2*i}, v{SC+2*i+1}")
        k.e(f"v_mov_b32 v{P+6}, 0")
        k.e(f"v_mov_b32 v{P+7}, 0")
    k.e("s_waitcnt lgkmcnt(0)")
    k.e(f"v_lshlrev_b32 v{vT3}, 13, v{vM}")
    k.e(f"v_lshl_add_u32 v{vT3}, v{vG}, 3, v{vT3}")
    k.e("s_lshl_b32 s27, s20, 18")
    k.e("s_add_u32 s27, s27, s26")
    k.e(f"s_add_u32 s27, s27, {OB_OFF}")
    for dt in range(8):
        k.e(f"ds_read_b64_tr_b16 v[{VF}:{VF+1}], v{vVrd} offset:{32*dt}")
        k.e(f"ds_read_b64_tr_b16 v[{VF+2}:{VF+3}], v{vVrd} offset:{32*dt+16*RS}")
        k.e(f"ds_read_b64_tr_b16 v[{VF+4}:{VF+5}], v{vVrd} offset:{32*dt+32*RS}")
        k.e(f"ds_read_b64_tr_b16 v[{VF+6}:{VF+7}], v{vVrd} offset:{32*dt+32*RS}")
        k.e("s_waitcnt lgkmcnt(0)")
        for qt in range(2):
            P = PF + 8 * qt
            k.e(f"v_mfma_f32_16x16x32_bf16 v[{OA}:{OA+3}], v[{VF}:{VF+3}], v[{P}:{P+3}], 0")
            k.e(f"v_mfma_f32_16x16x32_bf16 v[{OA}:{OA+3}], v[{VF+4}:{VF+7}], v[{P+4}:{P+7}], v[{OA}:{OA+3}]")
            k.e("s_nop 7")
            k.e("s_nop 3")
            k.e(f"v_cvt_pk_bf16_f32 v{vT1}, v{OA}, v{OA+1}")
            k.e(f"v_cvt_pk_bf16_f32 v{vT2}, v{OA+2}, v{OA+3}")
            k.e(f"s_add_u32 s30, s27, {qt*16*8192}")
            k.e(f"buffer_store_dwordx2 v[{vT1}:{vT2}], v{vT3}, s[4:7], s30 offen offset:{32*dt}")
            k.e("s_nop 1")
    k.label(end)
    return k, NV, 4 * 48 * RS


def attnA_kernel(name):
    k = K(name)
    RSV = 80
    vL, vM, vG, vT0, vT1, vT2, vT3 = 1, 2, 3, 4, 6, 7, 8
    vA0, vVrd = 9, 10
    QF = 12
    KF = 16
    SC = 32
    PF = 100
    VF = 136
    OA = 140
    NV = 148
    end = f"{name}_end"
    k.e("s_cmp_ge_u32 s2, 1024")
    k.e(f"s_cbranch_scc1 {end}")
    k.e("s_load_dwordx2 s[64:65], s[0:1], 96")
    k.e(f"v_and_b32 v{vL}, 63, v0")
    k.e(f"v_lshrrev_b32 v{vT0}, 6, v0")
    k.e("s_nop 1")
    k.e(f"v_readfirstlane_b32 s3, v{vT0}")
    k.e(f"v_and_b32 v{vM}, 15, v{vL}")
    k.e(f"v_lshrrev_b32 v{vG}, 4, v{vL}")
    k.e("s_and_b32 s20, s2, 31")
    k.e("s_lshr_b32 s21, s2, 5")
    k.e("s_waitcnt lgkmcnt(0)")
    srd(k, 4, 64, 65, "0x10000000")
    k.e("s_lshl_b32 s22, s21, 6")
    k.e("s_lshl_b32 s23, s3, 4")
    k.e("s_add_u32 s23, s23, s22")
    k.e("s_mov_b32 s24, 6144")
    k.e(f"v_mul_lo_u32 v{vA0}, v{vM}, s24")
    k.e(f"v_lshl_add_u32 v{vA0}, v{vG}, 4, v{vA0}")
    k.e("s_lshl_b32 s26, s20, 6")
    k.e("s_mul_i32 s27, s23, 6144")
    k.e("s_add_u32 s27, s27, s26")
    k.e(f"buffer_load_dwordx4 v[{QF}:{QF+3}], v{vA0}, s[4:7], s27 offen")
    k.e(f"v_lshrrev_b32 v{vT0}, 2, v0")
    k.e(f"v_and_b32 v{vT1}, 3, v0")
    k.e(f"v_mul_u32_u24 v{vT3}, {RSV}, v{vT0}")
    k.e(f"v_lshl_add_u32 v{vT3}, v{vT1}, 4, v{vT3}")
    for i in range(5):
        k.e(f"s_add_i32 s27, s22, {64*i-256}")
        k.e(f"v_add_u32 v{vT2}, s27, v{vT0}")
        k.e(f"v_max_i32 v{vT2}, 0, v{vT2}")
        k.e(f"v_mul_lo_u32 v{vT2}, v{vT2}, s24")
        k.e(f"v_lshl_add_u32 v{vT2}, v{vT1}, 4, v{vT2}")
        k.e(f"s_add_u32 s28, s26, 4096")
        k.e(f"buffer_load_dwordx4 v[{KF}:{KF+3}], v{vT2}, s[4:7], s28 offen")
        k.e("s_waitcnt vmcnt(0)")
        k.e(f"ds_write_b128 v{vT3}, v[{KF}:{KF+3}] offset:{64*i*RSV}")
    k.e("s_waitcnt lgkmcnt(0)")
    k.e("s_barrier")
    for kt in range(17):
        k.e(f"s_add_i32 s27, s23, {16*kt-256}")
        k.e(f"v_add_u32 v{vT2}, s27, v{vM}")
        k.e(f"v_max_i32 v{vT2}, 0, v{vT2}")
        k.e(f"v_mul_lo_u32 v{vT2}, v{vT2}, s24")
        k.e(f"v_lshl_add_u32 v{vT2}, v{vG}, 4, v{vT2}")
        k.e(f"s_add_u32 s28, s26, 2048")
        k.e(f"buffer_load_dwordx4 v[{KF+4*(kt%4)}:{KF+4*(kt%4)+3}], v{vT2}, s[4:7], s28 offen")
        if kt % 4 == 3 or kt == 16:
            k.e("s_waitcnt vmcnt(0)")
            for k2 in range(kt - (kt % 4), kt + 1):
                k.e(f"v_mfma_f32_16x16x32_bf16 v[{SC+4*k2}:{SC+4*k2+3}], v[{KF+4*(k2%4)}:{KF+4*(k2%4)+3}], v[{QF}:{QF+3}], 0")
    k.e("s_nop 7")
    k.e("s_nop 3")
    round_scale(k, SC, 68, "0x3e3504f3")
    k.e("s_mov_b32 s24, 0xf149f2ca")
    k.e(f"v_lshlrev_b32 v{vT3}, 2, v{vG}")
    k.e(f"v_sub_u32 v{vT3}, v{vM}, v{vT3}")
    k.e(f"v_mov_b32 v{vT1}, s24")
    for kt in range(17):
        for r in range(4):
            k.e(f"v_add_u32 v{vT0}, {256-16*kt-r}, v{vT3}")
            k.e(f"v_cmp_lt_u32 vcc, 255, v{vT0}")
            k.e(f"v_cndmask_b32 v{SC+4*kt+r}, v{SC+4*kt+r}, v{vT1}, vcc")
            k.e(f"s_add_i32 s27, s23, {16*kt-256+r}")
            k.e(f"v_lshl_add_u32 v{vT2}, v{vG}, 2, s27")
            k.e(f"v_cmp_gt_i32 vcc, 0, v{vT2}")
            k.e(f"v_cndmask_b32 v{SC+4*kt+r}, v{SC+4*kt+r}, v{vT1}, vcc")
    softmax_tail(k, SC, 68, vL, vT0, vT1, vT2)
    for i in range(34):
        k.e(f"v_cvt_pk_bf16_f32 v{PF+i}, v{SC+2*i}, v{SC+2*i+1}")
    k.e(f"v_mov_b32 v{PF+34}, 0")
    k.e(f"v_mov_b32 v{PF+35}, 0")
    k.e(f"v_lshrrev_b32 v{vT0}, 2, v{vM}")
    k.e(f"v_lshl_add_u32 v{vT0}, v{vG}, 2, v{vT0}")
    k.e("s_lshl_b32 s27, s3, 4")
    k.e(f"v_add_u32 v{vT0}, s27, v{vT0}")
    k.e(f"v_mul_u32_u24 v{vT0}, {RSV}, v{vT0}")
    k.e(f"v_and_b32 v{vT1}, 3, v{vL}")
    k.e(f"v_lshl_add_u32 v{vVrd}, v{vT1}, 3, v{vT0}")
    for dt in range(2):
        for i in range(4):
            k.e(f"v_mov_b32 v{OA+4*dt+i}, 0")
    for kp in range(9):
        for dt in range(2):
            k.e(f"ds_read_b64_tr_b16 v[{VF}:{VF+1}], v{vVrd} offset:{32*dt+32*kp*RSV}")
            kt2 = min(2 * kp + 1, 16)
            k.e(f"ds_read_b64_tr_b16 v[{VF+2}:{VF+3}], v{vVrd} offset:{32*dt+16*kt2*RSV}")
            k.e("s_waitcnt lgkmcnt(0)")
            k.e(f"v_mfma_f32_16x16x32_bf16 v[{OA+4*dt}:{OA+4*dt+3}], v[{VF}:{VF+3}], v[{PF+4*kp}:{PF+4*kp+3}], v[{OA+4*dt}:{OA+4*dt+3}]")
    k.e("s_nop 7")
    k.e("s_nop 3")
    k.e(f"v_lshlrev_b32 v{vT3}, 11, v{vM}")
    k.e(f"v_lshl_add_u32 v{vT3}, v{vG}, 3, v{vT3}")
    k.e("s_lshl_b32 s27, s23, 11")
    k.e("s_add_u32 s27, s27, s26")
    k.e(f"s_add_u32 s27, s27, {OA_OFF}")
    for dt in range(2):
        k.e(f"v_cvt_pk_bf16_f32 v{vT1}, v{OA+4*dt}, v{OA+4*dt+1}")
        k.e(f"v_cvt_pk_bf16_f32 v{vT2}, v{OA+4*dt+2}, v{OA+4*dt+3}")
        k.e(f"buffer_store_dwordx2 v[{vT1}:{vT2}], v{vT3}, s[4:7], s27 offen offset:{32*dt}")
        k.e("s_nop 1")
    k.label(end)
    return k, NV, 320 * RSV


def decode_g2(k):
    lb = k.newlabel("g2a")
    ld = k.newlabel("g2d")
    k.e("s_and_b32 s76, s2, 127")
    k.e("s_lshr_b32 s72, s76, 3")
    k.e("s_and_b32 s73, s76, 7")
    k.e("s_lshl_b32 s75, s73, 8")
    k.e(f"s_mul_i32 s74, s72, {128*4096}")
    k.e("s_add_u32 s74, s74, s75")
    k.e("s_cmp_ge_u32 s2, 128")
    k.e(f"s_cbranch_scc1 {lb}")
    k.e(f"s_mul_i32 s77, s72, {128*8192}")
    k.e(f"s_add_u32 s77, s77, {OB_OFF}")
    add64(k, 20, 21, 64, 65, 77)
    add64(k, 22, 23, 56, 57, 75)
    k.e("s_add_u32 s74, s74, 2048")
    add64(k, 24, 25, 60, 61, 74)
    k.e("s_mov_b32 s26, 8192")
    k.e("s_mov_b32 s29, 64")
    k.e(f"s_branch {ld}")
    k.label(lb)
    k.e(f"s_mul_i32 s77, s72, {128*2048}")
    k.e(f"s_add_u32 s77, s77, {OA_OFF}")
    add64(k, 20, 21, 64, 65, 77)
    add64(k, 22, 23, 44, 45, 75)
    add64(k, 24, 25, 60, 61, 74)
    k.e("s_mov_b32 s26, 2048")
    k.e("s_mov_b32 s29, 16")
    k.label(ld)
    k.e("s_mov_b32 s27, 2048")
    k.e("s_mov_b32 s28, 4096")


def main():
    out = []
    launches = []
    g1, nv = gemm_kernel("gemm1_kernel", 256, 256, 4, 2, decode_g1, 96 + 384, pre=clear_pre)
    out.append(kernel_wrap(g1, nv))
    launches.append(("gemm1_kernel", 480, 512, 131072))
    rk, nv, lds = rec_kernel("rec_kernel")
    out.append(kernel_wrap(rk, nv))
    launches.append(("rec_kernel", 256, 256, lds))
    ak, nv, lds = attnA_kernel("attnA_kernel")
    out.append(kernel_wrap(ak, nv))
    launches.append(("attnA_kernel", 1024, 256, lds))
    bk, nv, lds = attnB_kernel("attnB_kernel")
    out.append(kernel_wrap(bk, nv))
    launches.append(("attnB_kernel", 512, 256, lds))
    g2, nv = gemm_kernel("gemm2_kernel", 128, 128, 2, 2, decode_g2, 256)
    out.append(kernel_wrap(g2, nv))
    launches.append(("gemm2_kernel", 256, 256, 65536))
    hdr = []
    for (n, g, b, lds) in launches:
        hdr.append(f"; @launch kernel={n} grid=({g},1,1) block=({b},1,1) lds={lds}")
    hdr.append('.amdgcn_target "amdgcn-amd-amdhsa--gfx950"')
    print("\n".join(hdr) + "\n" + "\n".join(out))


if __name__ == "__main__":
    main()
```

```python
import sys

MiB = 1 << 20
QKVA_OFF = 0
QKVB_OFF = 12 * MiB
OA_OFF = 60 * MiB
OB_OFF = 64 * MiB
MEMKV_OFF = 80 * MiB
HAND_OFF = 96 * MiB

KA = dict(A_x=0, A_wqkv=8, A_wo=16, B_x=24, B_mem0=32, B_Wq=40, B_Wk=48, B_Wv=56, B_Wo=64,
          seg=72, out=80, dbg=88, ws=96)


class K:
    def __init__(self, name):
        self.name = name
        self.L = []
        self.lbl = 0

    def e(self, s):
        import re
        m = re.search(r"offset:(\d+)", s)
        if m and s.startswith("buffer_"):
            assert int(m.group(1)) < 4096, s
        if m and s.startswith("ds_"):
            assert int(m.group(1)) < 65536, s
        self.L.append("    " + s)

    def label(self, s):
        self.L.append(s + ":")

    def newlabel(self, p="L"):
        self.lbl += 1
        return f"{self.name}_{p}{self.lbl}"

    def text(self):
        return "\n".join(self.L)


def kernel_wrap(k, vgprs, sgprs=102, lds_unused=0):
    acc = (vgprs + 3) // 4 * 4
    return f"""
.text
.globl {k.name}
.p2align 8
.type {k.name},@function
{k.name}:
{k.text()}
    s_endpgm
.section .rodata,"a"
.p2align 6
.amdhsa_kernel {k.name}
  .amdhsa_next_free_vgpr {vgprs}
  .amdhsa_next_free_sgpr {sgprs}
  .amdhsa_accum_offset {acc}
  .amdhsa_group_segment_fixed_size 0
  .amdhsa_kernarg_size 104
  .amdhsa_user_sgpr_count 2
  .amdhsa_user_sgpr_kernarg_segment_ptr 1
  .amdhsa_system_sgpr_workgroup_id_x 1
.end_amdhsa_kernel
"""


def srd(k, s, base_lo, base_hi, nrec="0x7ffffff0"):
    k.e(f"s_mov_b32 s{s}, s{base_lo}")
    k.e(f"s_and_b32 s{s+1}, s{base_hi}, 0xffff")
    k.e(f"s_mov_b32 s{s+2}, {nrec}")
    k.e(f"s_mov_b32 s{s+3}, 0x00020000")


def gemm_kernel(name, BM, BN, WM, WN, decode, ntiles, pre=None):
    k = K(name)
    NW = WM * WN
    WTM, WTN = BM // WM, BN // WN
    MT, NT = WTM // 16, WTN // 16
    A_BYTES = BM * 128
    B_BYTES = 64 * BN * 2
    STG = A_BYTES + B_BYTES
    nA = BM // 8 // NW
    RPI = 1024 // (BN * 2)
    nB = 64 // RPI // NW
    ACC = 0
    XF = ACC + MT * NT * 4
    WF = XF + MT * 4
    VA = WF + NT * 4
    VB = VA + 4
    VDA = VB + 2 * NT
    VDB = VDA + 2
    VC = VDB + 2
    VT = VC + 1
    NV = VT + 8
    assert NV <= 256, NV

    k.e(f"s_cmp_ge_u32 s2, {ntiles}")
    k.e(f"s_cbranch_scc1 {name}_end")
    k.e("s_load_dwordx16 s[40:55], s[0:1], 0")
    k.e("s_load_dwordx8 s[56:63], s[0:1], 64")
    k.e("s_load_dwordx2 s[64:65], s[0:1], 96")
    k.e(f"v_and_b32 v{VT}, 63, v0")
    k.e(f"v_lshrrev_b32 v{VT+1}, 6, v0")
    k.e("s_nop 1")
    k.e(f"v_readfirstlane_b32 s3, v{VT+1}")
    k.e("s_waitcnt lgkmcnt(0)")
    if pre:
        pre(k)
    decode(k)
    srd(k, 4, 20, 21)
    srd(k, 8, 22, 23)
    srd(k, 12, 24, 25)
    l = VT
    import math
    lgWN = int(math.log2(WN))
    k.e(f"s_lshr_b32 s30, s3, {lgWN}")
    k.e(f"s_and_b32 s31, s3, {WN-1}")
    t0, t1, t2, t3 = VT + 2, VT + 3, VT + 4, VT + 5
    k.e(f"v_and_b32 v{t0}, 15, v{l}")
    k.e(f"v_lshrrev_b32 v{t1}, 4, v{l}")
    k.e(f"v_lshrrev_b32 v{t2}, 1, v{t0}")
    k.e(f"s_mul_i32 s32, s30, {WTM*128}")
    for kc in range(2):
        k.e(f"v_or_b32 v{t3}, {4*kc}, v{t1}")
        k.e(f"v_xor_b32 v{t3}, v{t3}, v{t2}")
        k.e(f"v_lshlrev_b32 v{t3}, 4, v{t3}")
        k.e(f"v_lshl_add_u32 v{t3}, v{t0}, 7, v{t3}")
        k.e(f"v_add_u32 v{VA+kc}, s32, v{t3}")
        k.e(f"v_add_u32 v{VA+2+kc}, {STG}, v{VA+kc}")
    k.e(f"v_lshrrev_b32 v{t2}, 2, v{t0}")
    k.e(f"v_and_b32 v{t3}, 1, v{t1}")
    k.e(f"v_lshl_or_b32 v{t3}, v{t3}, 2, v{t2}")
    k.e(f"v_lshlrev_b32 v{t3}, 1, v{t3}")
    k.e(f"v_lshl_add_u32 v{t2}, v{t1}, 3, v{t2}")
    k.e(f"s_mov_b32 s33, {BN*2}")
    k.e(f"v_mul_lo_u32 v{t2}, v{t2}, s33")
    k.e(f"v_and_b32 v{t0}, 3, v{l}")
    k.e(f"v_and_b32 v{t1}, 1, v{t0}")
    k.e(f"v_lshl_add_u32 v{t2}, v{t1}, 3, v{t2}")
    k.e(f"v_add_u32 v{t2}, {A_BYTES}, v{t2}")
    k.e(f"v_lshrrev_b32 v{t0}, 1, v{t0}")
    k.e(f"s_mul_i32 s32, s31, {NT*2}")
    for nt in range(NT):
        k.e(f"s_add_u32 s33, s32, {2*nt}")
        k.e(f"v_or_b32 v{t1}, s33, v{t0}")
        k.e(f"v_xor_b32 v{t1}, v{t1}, v{t3}")
        k.e(f"v_lshl_add_u32 v{VB+nt}, v{t1}, 4, v{t2}")
        k.e(f"v_add_u32 v{VB+NT+nt}, {STG}, v{VB+nt}")
    k.e(f"v_lshrrev_b32 v{t0}, 3, v{l}")
    k.e(f"v_mul_lo_u32 v{t0}, v{t0}, s26")
    k.e(f"v_and_b32 v{t1}, 7, v{l}")
    k.e(f"v_lshrrev_b32 v{t2}, 4, v{l}")
    for par in range(2):
        k.e(f"v_or_b32 v{t3}, {4*par}, v{t2}")
        k.e(f"v_xor_b32 v{t3}, v{t3}, v{t1}")
        k.e(f"v_lshl_add_u32 v{VDA+par}, v{t3}, 4, v{t0}")
    CPR = BN * 2 // 16
    lgCPR = int(math.log2(CPR))
    assert nB == 4
    k.e(f"v_lshrrev_b32 v{t0}, {lgCPR}, v{l}")
    k.e(f"v_and_b32 v{t1}, {CPR-1}, v{l}")
    k.e(f"v_mul_lo_u32 v{t2}, v{t0}, s27")
    for par in range(2):
        if RPI == 2:
            k.e(f"s_and_b32 s33, s3, 1")
            k.e(f"s_lshl_b32 s33, s33, 2")
            k.e(f"s_or_b32 s33, s33, {2*par}")
            k.e(f"v_or_b32 v{t3}, s33, v{t0}")
        else:
            k.e(f"v_or_b32 v{t3}, {4*par}, v{t0}")
        k.e(f"v_lshlrev_b32 v{t3}, 1, v{t3}")
        k.e(f"v_xor_b32 v{t3}, v{t3}, v{t1}")
        k.e(f"v_lshl_add_u32 v{VDB+par}, v{t3}, 4, v{t2}")
    k.e(f"v_and_b32 v{t0}, 15, v{l}")
    k.e(f"s_mul_i32 s32, s30, {WTM}")
    k.e(f"v_add_u32 v{t0}, s32, v{t0}")
    k.e(f"v_mul_lo_u32 v{t0}, v{t0}, s28")
    k.e(f"v_lshrrev_b32 v{t1}, 4, v{l}")
    k.e(f"s_mul_i32 s32, s31, {WTN*2}")
    k.e(f"v_lshl_add_u32 v{t0}, v{t1}, 3, v{t0}")
    k.e(f"v_add_u32 v{VC}, s32, v{t0}")
    k.e(f"s_lshl_b32 s35, s26, 3")
    k.e(f"s_mul_i32 s34, s3, {nA}")
    k.e(f"s_mul_i32 s34, s34, s35")
    k.e(f"s_mul_i32 s37, s27, {RPI}")
    k.e(f"s_mul_i32 s36, s3, {nB}")
    k.e(f"s_mul_i32 s36, s36, s37")
    k.e(f"s_lshl_b32 s38, s27, 6")
    k.e(f"s_mul_i32 s66, s3, {nA*1024}")
    k.e(f"s_mul_i32 s67, s3, {nB*1024}")
    k.e(f"s_add_u32 s67, s67, {A_BYTES}")
    for i in range(MT * NT * 4):
        k.e(f"v_mov_b32 v{ACC+i}, 0")

    def issue_dma(stage):
        for ii in range(nA):
            k.e(f"s_add_u32 m0, s66, {stage*STG + ii*1024}")
            if ii == 0:
                k.e("s_mov_b32 s39, s34")
            else:
                k.e("s_add_u32 s39, s39, s35")
            k.e(f"buffer_load_dwordx4 v{VDA + (ii & 1)}, s[4:7], s39 offen lds")
        for ii in range(nB):
            par = (ii & 1) if RPI == 2 else ((ii >> 1) & 1)
            k.e(f"s_add_u32 m0, s67, {stage*STG + ii*1024}")
            if ii == 0:
                k.e("s_mov_b32 s39, s36")
            else:
                k.e("s_add_u32 s39, s39, s37")
            k.e(f"buffer_load_dwordx4 v{VDB + par}, s[8:11], s39 offen lds")
        k.e("s_add_u32 s34, s34, 128")
        k.e("s_add_u32 s36, s36, s38")

    def compute(stage):
        for ks in range(2):
            for mt in range(MT):
                k.e(f"ds_read_b128 v[{XF+4*mt}:{XF+4*mt+3}], v{VA+2*stage+ks} offset:{mt*2048}")
            for nt in range(NT):
                for u in range(2):
                    k.e(f"ds_read_b64_tr_b16 v[{WF+4*nt+2*u}:{WF+4*nt+2*u+1}], v{VB+NT*stage+nt} "
                        f"offset:{(32*ks+4*u)*BN*2}")
            k.e("s_waitcnt lgkmcnt(0)")
            for mt in range(MT):
                for nt in range(NT):
                    a = ACC + (mt * NT + nt) * 4
                    k.e(f"v_mfma_f32_16x16x32_bf16 v[{a}:{a+3}], v[{WF+4*nt}:{WF+4*nt+3}], "
                        f"v[{XF+4*mt}:{XF+4*mt+3}], v[{a}:{a+3}]")

    k.e("s_nop 4")
    issue_dma(0)
    k.e("s_mov_b32 s70, 0")
    loop = k.newlabel("loop")
    k.label(loop)
    for stage in range(2):
        k.e("s_waitcnt vmcnt(0)")
        k.e("s_barrier")
        skip = k.newlabel("skip")
        k.e(f"s_add_u32 s71, s70, {stage+1}")
        k.e("s_cmp_ge_u32 s71, s29")
        k.e(f"s_cbranch_scc1 {skip}")
        issue_dma(1 - stage)
        k.label(skip)
        compute(stage)
    k.e("s_add_u32 s70, s70, 2")
    k.e("s_cmp_lt_u32 s70, s29")
    k.e(f"s_cbranch_scc1 {loop}")
    k.e("s_nop 7")
    k.e("s_nop 7")
    k.e("s_lshl_b32 s35, s28, 4")
    k.e("s_mov_b32 s39, 0")
    for mt in range(MT):
        for nt in range(NT):
            a = ACC + (mt * NT + nt) * 4
            k.e(f"v_cvt_pk_bf16_f32 v{a}, v{a}, v{a+1}")
            k.e(f"v_cvt_pk_bf16_f32 v{a+1}, v{a+2}, v{a+3}")
            k.e(f"buffer_store_dwordx2 v[{a}:{a+1}], v{VC}, s[12:15], s39 offen offset:{nt*32}")
        k.e("s_add_u32 s39, s39, s35")
    k.label(f"{name}_end")
    return k, NV


def add64(k, dlo, dhi, alo, ahi, b):
    k.e(f"s_add_u32 s{dlo}, s{alo}, s{b}")
    k.e(f"s_addc_u32 s{dhi}, s{ahi}, 0")


def decode_g1(k):
    lb = k.newlabel("g1b")
    ld = k.newlabel("g1d")
    k.e("s_cmp_ge_u32 s2, 96")
    k.e(f"s_cbranch_scc1 {lb}")
    k.e("s_mul_hi_u32 s72, s2, 0x15555556")
    k.e("s_mul_i32 s73, s72, 12")
    k.e("s_sub_u32 s73, s2, s73")
    k.e("s_lshl_b32 s74, s72, 19")
    add64(k, 20, 21, 40, 41, 74)
    k.e("s_lshl_b32 s74, s73, 9")
    add64(k, 22, 23, 42, 43, 74)
    k.e(f"s_mul_i32 s74, s72, {256*3072*2}")
    k.e("s_lshl_b32 s75, s73, 9")
    k.e("s_add_u32 s74, s74, s75")
    k.e(f"s_add_u32 s74, s74, {QKVA_OFF}")
    add64(k, 24, 25, 64, 65, 74)
    k.e("s_mov_b32 s26, 2048")
    k.e("s_mov_b32 s27, 6144")
    k.e("s_mov_b32 s28, 6144")
    k.e("s_mov_b32 s29, 16")
    k.e(f"s_branch {ld}")
    k.label(lb)
    k.e("s_sub_u32 s76, s2, 96")
    k.e("s_mul_hi_u32 s72, s76, 0x5555556")
    k.e("s_mul_i32 s73, s72, 48")
    k.e("s_sub_u32 s73, s76, s73")
    k.e("s_lshl_b32 s74, s72, 19")
    add64(k, 20, 21, 46, 47, 74)
    k.e("s_lshr_b32 s75, s73, 4")
    k.e("s_and_b32 s77, s73, 15")
    k.e("s_mov_b32 s22, s50")
    k.e("s_mov_b32 s23, s51")
    k.e("s_cmp_eq_u32 s75, 1")
    k.e("s_cselect_b32 s22, s52, s22")
    k.e("s_cselect_b32 s23, s53, s23")
    k.e("s_cmp_eq_u32 s75, 2")
    k.e("s_cselect_b32 s22, s54, s22")
    k.e("s_cselect_b32 s23, s55, s23")
    k.e("s_lshl_b32 s74, s77, 9")
    add64(k, 22, 23, 22, 23, 74)
    k.e(f"s_mul_i32 s74, s72, {256*12288*2}")
    k.e("s_lshl_b32 s75, s73, 9")
    k.e("s_add_u32 s74, s74, s75")
    k.e(f"s_add_u32 s74, s74, {QKVB_OFF}")
    add64(k, 24, 25, 64, 65, 74)
    k.e("s_mov_b32 s26, 2048")
    k.e("s_mov_b32 s27, 8192")
    k.e("s_mov_b32 s28, 24576")
    k.e("s_mov_b32 s29, 16")
    k.label(ld)


XB_OFF = HAND_OFF
PART_OFF = XB_OFF + 2 * 32 * 12288
MEMX_OFF = PART_OFF + 2 * 32 * 256 * 256
HAND_END = MEMX_OFF + 2 * 32768
POLL_MAX = 400000
import os
REC_STOP = int(os.environ.get('REC_STOP', '63'))
SCF = os.environ.get('SCF', 'sc0 sc1')
SLEEP = int(os.environ.get('SLEEP', '0'))


def rec_kernel(name):
    k = K(name)
    WQ = 4
    WO = 100
    MF = 132
    ACC = 196
    PX = 208
    V = 224
    vL, vM, vG = V, V + 1, V + 2
    vT0, vT1, vT2, vT3 = V + 3, V + 4, V + 5, V + 6
    vMemOff = V + 7
    vXBst = V + 8
    vXBld = V + 9
    vLdsXw = V + 10
    vKrd = V + 11
    vQrd = V + 12
    vVrd = V + 13
    vOwr = V + 14
    vOrd = V + 15
    vPst = V + 16
    vPld = V + 17
    vMXst = V + 18
    vKVst = V + 19
    vRedW = V + 20
    vPXg = V + 21
    vPXl = V + 22
    NV = V + 24
    RS = 272
    KL = 0
    VL = KL + 48 * RS
    QL = VL + 48 * RS
    OL = QL + 16 * RS
    RED = OL + 16 * RS
    LDS_BYTES = RED + 12288
    end = f"{name}_end"
    k.e("s_cmp_ge_u32 s2, 256")
    k.e(f"s_cbranch_scc1 {end}")
    k.e("s_load_dwordx16 s[40:55], s[0:1], 0")
    k.e("s_load_dwordx8 s[56:63], s[0:1], 64")
    k.e("s_load_dwordx2 s[64:65], s[0:1], 96")
    k.e(f"v_and_b32 v{vL}, 63, v0")
    k.e(f"v_lshrrev_b32 v{vT0}, 6, v0")
    k.e("s_nop 1")
    k.e(f"v_readfirstlane_b32 s3, v{vT0}")
    k.e(f"v_and_b32 v{vM}, 15, v{vL}")
    k.e(f"v_lshrrev_b32 v{vG}, 4, v{vL}")
    k.e("s_lshr_b32 s20, s2, 3")
    k.e("s_and_b32 s21, s2, 7")
    k.e("s_waitcnt lgkmcnt(0)")
    srd(k, 4, 64, 65, "0x10000000")
    k.e("s_lshl_b32 s24, s20, 7")
    k.e("s_lshl_b32 s25, s21, 4")
    k.e("s_add_u32 s24, s24, s25")
    k.e(f"v_add_u32 v{vT0}, s24, v{vM}")
    k.e(f"v_lshlrev_b32 v{vT0}, 1, v{vT0}")
    k.e(f"v_lshl_add_u32 v{vT0}, v{vG}, 16, v{vT0}")
    k.e("s_lshl_b32 s26, s3, 21")
    for t in range(3):
        srd(k, 8, 50 + 2 * t, 51 + 2 * t, "0x800000")
        k.e("s_mov_b32 s27, s26")
        for ks in range(8):
            for i in range(8):
                k.e(f"buffer_load_ushort v{MF+8*(ks%4)+i}, v{vT0}, s[8:11], s27 offen")
                k.e("s_add_u32 s27, s27, 8192")
            k.e("s_add_u32 s27, s27, 196608")
            if ks % 4 == 3:
                k.e("s_waitcnt vmcnt(0)")
                for k2 in range(4):
                    for i2 in range(4):
                        r = WQ + ((ks - 3 + k2) * 3 + t) * 4 + i2
                        k.e(f"v_lshl_or_b32 v{r}, v{MF+8*k2+2*i2+1}, 16, v{MF+8*k2+2*i2}")
    srd(k, 8, 56, 57, "0x800000")
    k.e("s_lshl_b32 s24, s21, 7")
    k.e("s_lshl_b32 s25, s3, 5")
    k.e("s_add_u32 s24, s24, s25")
    k.e(f"v_add_u32 v{vT0}, s24, v{vM}")
    k.e(f"v_lshlrev_b32 v{vT0}, 1, v{vT0}")
    k.e(f"v_lshl_add_u32 v{vT0}, v{vG}, 14, v{vT0}")
    k.e("s_lshl_b32 s26, s20, 18")
    for u in range(2):
        k.e("s_mov_b32 s27, s26")
        for ks in range(4):
            for i in range(8):
                k.e(f"buffer_load_ushort v{MF+8*ks+i}, v{vT0}, s[8:11], s27 offen offset:{32*u}")
                k.e("s_add_u32 s27, s27, 2048")
            k.e("s_add_u32 s27, s27, 49152")
        k.e("s_waitcnt vmcnt(0)")
        for ks in range(4):
            for i2 in range(4):
                r = WO + (u * 4 + ks) * 4 + i2
                k.e(f"v_lshl_or_b32 v{r}, v{MF+8*ks+2*i2+1}, 16, v{MF+8*ks+2*i2}")
    k.e(f"v_and_b32 v{vT0}, 7, v{vL}")
    k.e(f"v_lshl_add_u32 v{vT1}, v{vG}, 3, v{vT0}")
    k.e(f"v_lshlrev_b32 v{vT1}, 5, v{vT1}")
    k.e("s_lshl_b32 s24, s3, 13")
    k.e(f"v_add_u32 v{vMemOff}, s24, v{vT1}")
    k.e("s_mul_i32 s24, s20, 3")
    k.e("s_add_u32 s24, s24, s3")
    k.e("s_lshl_b32 s24, s24, 12")
    k.e("s_lshl_b32 s25, s21, 6")
    k.e("s_add_u32 s24, s24, s25")
    k.e(f"v_lshlrev_b32 v{vT1}, 9, v{vT0}")
    k.e(f"v_lshl_add_u32 v{vT1}, v{vG}, 4, v{vT1}")
    k.e(f"v_add_u32 v{vXBst}, s24, v{vT1}")
    k.e("s_mul_i32 s24, s20, 12288")
    k.e("s_mul_i32 s25, s3, 3072")
    k.e("s_add_u32 s24, s24, s25")
    k.e(f"v_lshlrev_b32 v{vT1}, 4, v{vL}")
    k.e(f"v_add_u32 v{vXBld}, s24, v{vT1}")
    k.e("s_lshl_b32 s24, s20, 8")
    k.e("s_lshl_b32 s25, s21, 5")
    k.e("s_add_u32 s24, s24, s25")
    k.e("s_sub_u32 s25, s3, 1")
    k.e("s_lshl_b32 s25, s25, 13")
    k.e("s_add_u32 s24, s24, s25")
    k.e(f"v_lshlrev_b32 v{vT1}, 14, v{vT0}")
    k.e(f"v_lshl_add_u32 v{vT1}, v{vG}, 3, v{vT1}")
    k.e(f"v_add_u32 v{vKVst}, s24, v{vT1}")
    k.e("s_mul_i32 s24, s3, 3072")
    k.e(f"v_lshlrev_b32 v{vT1}, 4, v{vL}")
    k.e(f"v_add_u32 v{vT1}, s24, v{vT1}")
    k.e(f"v_add_u32 v{vRedW}, {RED}, v{vT1}")
    k.e(f"v_lshrrev_b32 v{vT1}, 5, v{vL}")
    k.e(f"v_mul_u32_u24 v{vT1}, {RS}, v{vT1}")
    k.e(f"v_and_b32 v{vT2}, 31, v{vL}")
    k.e(f"v_lshl_add_u32 v{vLdsXw}, v{vT2}, 3, v{vT1}")
    k.e(f"v_mul_u32_u24 v{vT1}, {RS}, v{vM}")
    k.e(f"v_lshl_add_u32 v{vKrd}, v{vG}, 4, v{vT1}")
    k.e(f"v_lshrrev_b32 v{vT1}, 2, v{vM}")
    k.e(f"v_lshl_add_u32 v{vT1}, v{vG}, 2, v{vT1}")
    k.e(f"v_mul_u32_u24 v{vT1}, {RS}, v{vT1}")
    k.e(f"v_and_b32 v{vT2}, 3, v{vL}")
    k.e(f"v_lshl_add_u32 v{vT1}, v{vT2}, 3, v{vT1}")
    k.e("s_lshl_b32 s24, s3, 6")
    k.e(f"v_add_u32 v{vT1}, s24, v{vT1}")
    k.e(f"v_add_u32 v{vVrd}, {VL}, v{vT1}")
    k.e(f"v_mul_u32_u24 v{vT1}, {RS}, v{vM}")
    k.e(f"v_lshl_add_u32 v{vT1}, v{vG}, 3, v{vT1}")
    k.e(f"v_add_u32 v{vT1}, s24, v{vT1}")
    k.e(f"v_add_u32 v{vOwr}, {OL}, v{vT1}")
    k.e("s_lshl_b32 s24, s20, 16")
    k.e("s_lshl_b32 s25, s21, 13")
    k.e("s_add_u32 s24, s24, s25")
    k.e("s_lshl_b32 s25, s3, 11")
    k.e("s_add_u32 s24, s24, s25")
    k.e(f"v_lshl_add_u32 v{vT1}, v{vG}, 3, v{vT0}")
    k.e(f"v_lshlrev_b32 v{vT1}, 5, v{vT1}")
    k.e(f"v_add_u32 v{vPst}, s24, v{vT1}")
    k.e("s_lshl_b32 s24, s2, 8")
    k.e(f"v_lshlrev_b32 v{vT1}, 16, v{vG}")
    k.e(f"v_lshl_add_u32 v{vT1}, v{vM}, 4, v{vT1}")
    k.e(f"v_add_u32 v{vPld}, s24, v{vT1}")
    k.e("s_lshr_b32 s24, s2, 1")
    k.e("s_lshl_b32 s24, s24, 8")
    k.e("s_and_b32 s25, s2, 1")
    k.e("s_lshl_b32 s25, s25, 4")
    k.e("s_add_u32 s24, s24, s25")
    k.e(f"v_lshrrev_b32 v{vT1}, 1, v{vM}")
    k.e(f"v_lshlrev_b32 v{vT1}, 5, v{vT1}")
    k.e(f"v_and_b32 v{vT2}, 1, v{vM}")
    k.e(f"v_lshl_add_u32 v{vT1}, v{vT2}, 3, v{vT1}")
    k.e(f"v_add_u32 v{vMXst}, s24, v{vT1}")
    k.e(f"v_lshrrev_b32 v{vT1}, 3, v0")
    k.e("s_mov_b32 s24, 24576")
    k.e(f"v_mul_lo_u32 v{vT2}, v{vT1}, s24")
    k.e(f"v_and_b32 v{vT3}, 7, v0")
    k.e(f"v_lshl_add_u32 v{vT2}, v{vT3}, 4, v{vT2}")
    k.e("s_lshl_b32 s24, s20, 8")
    k.e(f"s_add_u32 s24, s24, {QKVB_OFF + 8192}")
    k.e(f"v_add_u32 v{vPXg}, s24, v{vT2}")
    k.e(f"v_mul_u32_u24 v{vT2}, {RS}, v{vT1}")
    k.e(f"v_lshl_add_u32 v{vPXl}, v{vT3}, 4, v{vT2}")
    k.e(f"v_mov_b32 v{MF}, 0")
    k.e(f"v_mov_b32 v{MF+1}, 0")
    k.e(f"v_mov_b32 v{MF+2}, 0")
    k.e(f"v_mov_b32 v{MF+3}, 0")
    k.e(f"v_lshlrev_b32 v{vT1}, 4, v0")
    for i in range((RED + 4095) // 4096):
        k.e(f"ds_write_b128 v{vT1}, v[{MF}:{MF+3}] offset:{i*4096}")
    k.e("s_waitcnt lgkmcnt(0)")
    k.e("s_barrier")

    def stamp(idx):
        if not os.environ.get('REC_STAMP'):
            return
        lb = k.newlabel("st")
        k.e("s_or_b32 s34, s2, s3")
        k.e("s_cmp_lg_u32 s34, 0")
        k.e(f"s_cbranch_scc1 {lb}")
        k.e("s_cmp_lg_u32 s22, 10")
        k.e(f"s_cbranch_scc1 {lb}")
        k.e("s_memtime s[36:37]")
        k.e("s_waitcnt lgkmcnt(0)")
        k.e(f"v_mov_b32 v{vT3}, s36")
        srd(k, 68, 62, 63, "256")
        k.e(f"v_mov_b32 v{vT2}, {4*idx}")
        k.e(f"buffer_store_dword v{vT3}, v{vT2}, s[68:71], 0 offen")
        k.label(lb)

    def prefetch_x(sreg_seg):
        k.e(f"s_mul_i32 s28, s{sreg_seg}, {32*24576}")
        for c in range(2):
            k.e(f"buffer_load_dwordx4 v[{PX+4*c}:{PX+4*c+3}], v{vPXg}, s[4:7], s28 offen offset:{128*c}")
        k.e("s_add_u32 s28, s28, 8192")
        for c in range(2):
            k.e(f"buffer_load_dwordx4 v[{PX+8+4*c}:{PX+8+4*c+3}], v{vPXg}, s[4:7], s28 offen offset:{128*c}")

    k.e("s_mov_b32 s22, 0")
    prefetch_x(22)
    step = k.newlabel("step")
    k.label(step)
    stamp(0)
    k.e("s_add_u32 s23, s22, 1")
    k.e("s_and_b32 s29, s22, 1")
    have = k.newlabel("havemem")
    k.e("s_cmp_lg_u32 s22, 0")
    k.e(f"s_cbranch_scc1 {name}_poll_mem")
    srd(k, 8, 48, 49, "0x4000")
    k.e(f"v_and_b32 v{vT0}, 7, v{vL}")
    k.e(f"v_lshlrev_b32 v{vT0}, 11, v{vT0}")
    k.e(f"v_lshl_add_u32 v{vT0}, v{vG}, 4, v{vT0}")
    k.e("s_lshl_b32 s24, s3, 9")
    for ks in range(8):
        k.e(f"buffer_load_dwordx4 v[{MF+4*ks}:{MF+4*ks+3}], v{vT0}, s[8:11], s24 offen offset:{64*ks}")
    k.e("s_waitcnt vmcnt(0)")
    k.e(f"s_branch {have}")
    k.label(f"{name}_poll_mem")
    k.e(f"s_lshl_b32 s24, s29, 15")
    k.e(f"s_add_u32 s24, s24, {MEMX_OFF}")
    k.e(f"s_mov_b32 s30, 0")
    pp = k.newlabel("prepoll")
    nopp = k.newlabel("nopp")
    k.e("s_cmp_lg_u32 s3, 0")
    k.e(f"s_cbranch_scc1 {nopp}")
    k.label(pp)
    k.e("s_add_u32 s25, s24, 4096")
    k.e(f"buffer_load_dwordx4 v[{MF}:{MF+3}], v{vMemOff}, s[4:7], s25 offen offset:{3072+16} {SCF}")
    k.e("s_waitcnt vmcnt(0)")
    k.e(f"v_xor_b32 v{vT0}, s22, v{MF+1}")
    k.e(f"v_cmp_ne_u32 vcc, 0, v{vT0}")
    k.e("s_add_u32 s30, s30, 1")
    k.e(f"s_cmp_ge_u32 s30, {POLL_MAX}")
    k.e(f"s_cbranch_scc1 {end}")
    k.e(f"s_cbranch_vccnz {pp}")
    k.label(nopp)
    k.e("s_barrier")
    pl = k.newlabel("pollmem")
    k.label(pl)
    k.e("s_add_u32 s25, s24, 4096")
    for ks in range(8):
        for hh in range(2):
            k.e(f"buffer_load_dwordx4 v[{MF+8*ks+4*hh}:{MF+8*ks+4*hh+3}], v{vMemOff}, s[4:7], s{24 if ks < 4 else 25} offen offset:{1024*(ks%4)+16*hh} {SCF}")
    k.e("s_waitcnt vmcnt(0)")
    k.e(f"v_xor_b32 v{vT0}, s22, v{MF+1}")
    k.e(f"v_xor_b32 v{vT1}, s22, v{MF+3}")
    for q in range(1, 16):
        k.e(f"v_xor_b32 v{vT2}, s22, v{MF+4*q+1}")
        k.e(f"v_xor_b32 v{vT3}, s22, v{MF+4*q+3}")
        k.e(f"v_or3_b32 v{vT0}, v{vT0}, v{vT2}, v{vT3}")
    k.e(f"v_or_b32 v{vT0}, v{vT0}, v{vT1}")
    k.e(f"v_cmp_ne_u32 vcc, 0, v{vT0}")
    k.e("s_add_u32 s30, s30, 1")
    k.e(f"s_cmp_ge_u32 s30, {POLL_MAX}")
    k.e(f"s_cbranch_scc1 {end}")
    okl = k.newlabel("ok")
    k.e(f"s_cbranch_vccz {okl}")
    if SLEEP:
        k.e(f"s_sleep {SLEEP}")
    k.e(f"s_branch {pl}")
    k.label(okl)
    for ks in range(8):
        b = MF + 8 * ks
        d = MF + 4 * ks
        k.e(f"v_mov_b32 v{d}, v{b}")
        k.e(f"v_mov_b32 v{d+1}, v{b+2}")
        k.e(f"v_mov_b32 v{d+2}, v{b+4}")
        k.e(f"v_mov_b32 v{d+3}, v{b+6}")
    k.label(have)
    k.e("s_waitcnt vmcnt(0)")
    for c in range(2):
        k.e(f"ds_write_b128 v{vPXl}, v[{PX+4*c}:{PX+4*c+3}] offset:{KL+128*c}")
        k.e(f"ds_write_b128 v{vPXl}, v[{PX+8+4*c}:{PX+8+4*c+3}] offset:{VL+128*c}")
    stamp(1)
    for t in range(3):
        for i in range(4):
            k.e(f"v_mov_b32 v{ACC+4*t+i}, 0")
    k.e("s_nop 1")
    for ks in range(8):
        for t in range(3):
            w = WQ + (ks * 3 + t) * 4
            k.e(f"v_mfma_f32_16x16x32_bf16 v[{ACC+4*t}:{ACC+4*t+3}], v[{w}:{w+3}], v[{MF+4*ks}:{MF+4*ks+3}], v[{ACC+4*t}:{ACC+4*t+3}]")
    k.e("s_nop 7")
    k.e("s_nop 3")
    for t in range(3):
        k.e(f"ds_write_b128 v{vRedW}, v[{ACC+4*t}:{ACC+4*t+3}] offset:{1024*t}")
    k.e("s_waitcnt lgkmcnt(0)")
    k.e("s_barrier")
    stamp(2)
    nopub = k.newlabel("nopub")
    k.e("s_cmp_ge_u32 s3, 3")
    k.e(f"s_cbranch_scc1 {nopub}")
    k.e("s_lshl_b32 s24, s3, 10")
    k.e(f"v_lshlrev_b32 v{vT0}, 4, v{vL}")
    k.e(f"v_add_u32 v{vT0}, s24, v{vT0}")
    for w in range(4):
        k.e(f"ds_read_b128 v[{MF+4*w}:{MF+4*w+3}], v{vT0} offset:{RED + 3072*w}")
    k.e("s_waitcnt lgkmcnt(0)")
    for i in range(4):
        k.e(f"v_add_f32 v{MF+i}, v{MF+i}, v{MF+4+i}")
        k.e(f"v_add_f32 v{MF+8+i}, v{MF+8+i}, v{MF+12+i}")
    for i in range(4):
        k.e(f"v_add_f32 v{MF+i}, v{MF+i}, v{MF+8+i}")
    k.e(f"v_cvt_pk_bf16_f32 v{MF+16}, v{MF}, v{MF+1}")
    k.e(f"v_cvt_pk_bf16_f32 v{MF+18}, v{MF+2}, v{MF+3}")
    k.e(f"v_mov_b32 v{MF+17}, s23")
    k.e(f"v_mov_b32 v{MF+19}, s23")
    k.e(f"s_mul_i32 s24, s29, {32*12288}")
    k.e(f"s_add_u32 s24, s24, {XB_OFF}")
    k.e(f"buffer_store_dwordx4 v[{MF+16}:{MF+19}], v{vXBst}, s[4:7], s24 offen {SCF}")
    nokv = k.newlabel("nokv")
    k.e("s_cmp_eq_u32 s3, 0")
    k.e(f"s_cbranch_scc1 {nokv}")
    k.e(f"v_mov_b32 v{MF+17}, v{MF+18}")
    k.e(f"s_lshl_b32 s24, s22, 17")
    k.e(f"s_add_u32 s24, s24, {MEMKV_OFF}")
    k.e(f"buffer_store_dwordx2 v[{MF+16}:{MF+17}], v{vKVst}, s[4:7], s24 offen")
    k.label(nokv)
    k.label(nopub)
    k.e(f"s_cmp_eq_u32 s22, {REC_STOP}")
    k.e(f"s_cbranch_scc1 {end}")
    stamp(3)
    k.e(f"s_mul_i32 s24, s29, {32*12288}")
    k.e(f"s_add_u32 s24, s24, {XB_OFF}")
    k.e("s_mov_b32 s30, 0")
    pl = k.newlabel("pollx")
    k.label(pl)
    for qq in range(3):
        k.e(f"buffer_load_dwordx4 v[{MF+4*qq}:{MF+4*qq+3}], v{vXBld}, s[4:7], s24 offen offset:{1024*qq} {SCF}")
    k.e("s_waitcnt vmcnt(0)")
    k.e(f"v_xor_b32 v{vT0}, s23, v{MF+1}")
    k.e(f"v_xor_b32 v{vT1}, s23, v{MF+3}")
    for qq in range(1, 3):
        k.e(f"v_xor_b32 v{vT2}, s23, v{MF+4*qq+1}")
        k.e(f"v_xor_b32 v{vT3}, s23, v{MF+4*qq+3}")
        k.e(f"v_or3_b32 v{vT0}, v{vT0}, v{vT2}, v{vT3}")
    k.e(f"v_or_b32 v{vT0}, v{vT0}, v{vT1}")
    k.e(f"v_cmp_ne_u32 vcc, 0, v{vT0}")
    k.e("s_add_u32 s30, s30, 1")
    k.e(f"s_cmp_ge_u32 s30, {POLL_MAX}")
    k.e(f"s_cbranch_scc1 {end}")
    okl = k.newlabel("ok")
    k.e(f"s_cbranch_vccz {okl}")
    if SLEEP:
        k.e(f"s_sleep {SLEEP}")
    k.e(f"s_branch {pl}")
    k.label(okl)
    for qq in range(3):
        k.e(f"v_mov_b32 v{MF+4*qq+1}, v{MF+4*qq+2}")
    for qq in range(3):
        k.e(f"s_mul_i32 s24, s3, 3")
        k.e(f"s_add_u32 s24, s24, {qq}")
        k.e("s_lshr_b32 s25, s24, 2")
        k.e("s_and_b32 s24, s24, 3")
        k.e(f"s_mul_i32 s24, s24, {2*RS}")
        k.e(f"s_mov_b32 s26, {QL}")
        k.e("s_cmp_eq_u32 s25, 1")
        k.e(f"s_cselect_b32 s26, {KL+32*RS}, s26")
        k.e("s_cmp_eq_u32 s25, 2")
        k.e(f"s_cselect_b32 s26, {VL+32*RS}, s26")
        k.e("s_add_u32 s24, s24, s26")
        k.e(f"v_add_u32 v{vT0}, s24, v{vLdsXw}")
        k.e(f"ds_write_b64 v{vT0}, v[{MF+4*qq}:{MF+4*qq+1}]")
    k.e("s_waitcnt lgkmcnt(0)")
    k.e("s_barrier")
    k.e("s_add_u32 s31, s22, 1")
    prefetch_x(31)
    stamp(4)
    SC = MF
    KF = MF + 12
    QF = MF + 28
    for ks in range(4):
        k.e(f"ds_read_b128 v[{QF+4*ks}:{QF+4*ks+3}], v{vKrd} offset:{QL+64*ks}")
    for T in range(3):
        for i in range(4):
            k.e(f"v_mov_b32 v{SC+4*T+i}, 0")
    for T in range(3):
        for ks in range(4):
            k.e(f"ds_read_b128 v[{KF+4*ks}:{KF+4*ks+3}], v{vKrd} offset:{KL+16*T*RS+64*ks}")
        k.e("s_waitcnt lgkmcnt(0)")
        for ks in range(4):
            k.e(f"v_mfma_f32_16x16x32_bf16 v[{SC+4*T}:{SC+4*T+3}], v[{KF+4*ks}:{KF+4*ks+3}], v[{QF+4*ks}:{QF+4*ks+3}], v[{SC+4*T}:{SC+4*T+3}]")
    k.e("s_nop 7")
    k.e("s_nop 3")
    k.e("s_mov_b32 s24, 0x3db504f3")
    for q in range(12):
        k.e(f"v_cvt_pk_bf16_f32 v{SC+q}, v{SC+q}, v{SC+q}")
        k.e(f"v_lshlrev_b32 v{SC+q}, 16, v{SC+q}")
        k.e(f"v_mul_f32 v{SC+q}, s24, v{SC+q}")
        k.e(f"v_cvt_pk_bf16_f32 v{SC+q}, v{SC+q}, v{SC+q}")
        k.e(f"v_lshlrev_b32 v{SC+q}, 16, v{SC+q}")
    k.e(f"v_cmp_le_u32 vcc, 2, v{vG}")
    k.e("s_mov_b32 s24, 0xf149f2ca")
    for i in range(4):
        k.e(f"v_mov_b32 v{vT0}, s24")
        k.e(f"v_cndmask_b32 v{SC+8+i}, v{SC+8+i}, v{vT0}, vcc")
    k.e(f"v_max3_f32 v{vT0}, v{SC}, v{SC+1}, v{SC+2}")
    for q in range(3, 12, 2):
        if q + 1 < 12:
            k.e(f"v_max3_f32 v{vT0}, v{vT0}, v{SC+q}, v{SC+q+1}")
        else:
            k.e(f"v_max_f32 v{vT0}, v{vT0}, v{SC+q}")
    for x in (16, 32):
        k.e(f"v_xor_b32 v{vT1}, {x}, v{vL}")
        k.e(f"v_lshlrev_b32 v{vT1}, 2, v{vT1}")
        k.e(f"ds_bpermute_b32 v{vT2}, v{vT1}, v{vT0}")
        k.e("s_waitcnt lgkmcnt(0)")
        k.e(f"v_max_f32 v{vT0}, v{vT0}, v{vT2}")
    k.e("s_mov_b32 s24, 0x3fb8aa3b")
    for q in range(12):
        k.e(f"v_sub_f32 v{SC+q}, v{SC+q}, v{vT0}")
        k.e(f"v_mul_f32 v{SC+q}, s24, v{SC+q}")
        k.e(f"v_exp_f32 v{SC+q}, v{SC+q}")
    k.e("s_nop 0")
    k.e(f"v_add_f32 v{vT0}, v{SC}, v{SC+1}")
    for q in range(2, 12):
        k.e(f"v_add_f32 v{vT0}, v{vT0}, v{SC+q}")
    for x in (16, 32):
        k.e(f"v_xor_b32 v{vT1}, {x}, v{vL}")
        k.e(f"v_lshlrev_b32 v{vT1}, 2, v{vT1}")
        k.e(f"ds_bpermute_b32 v{vT2}, v{vT1}, v{vT0}")
        k.e("s_waitcnt lgkmcnt(0)")
        k.e(f"v_add_f32 v{vT0}, v{vT0}, v{vT2}")
    k.e(f"v_rcp_f32 v{vT0}, v{vT0}")
    k.e("s_nop 0")
    for q in range(12):
        k.e(f"v_mul_f32 v{SC+q}, v{SC+q}, v{vT0}")
    PF = KF
    k.e(f"v_cvt_pk_bf16_f32 v{PF}, v{SC}, v{SC+1}")
    k.e(f"v_cvt_pk_bf16_f32 v{PF+1}, v{SC+2}, v{SC+3}")
    k.e(f"v_cvt_pk_bf16_f32 v{PF+2}, v{SC+4}, v{SC+5}")
    k.e(f"v_cvt_pk_bf16_f32 v{PF+3}, v{SC+6}, v{SC+7}")
    k.e(f"v_cvt_pk_bf16_f32 v{PF+4}, v{SC+8}, v{SC+9}")
    k.e(f"v_cvt_pk_bf16_f32 v{PF+5}, v{SC+10}, v{SC+11}")
    k.e(f"v_mov_b32 v{PF+6}, 0")
    k.e(f"v_mov_b32 v{PF+7}, 0")
    VF = QF
    OACC = SC
    for du in range(2):
        for i in range(4):
            k.e(f"v_mov_b32 v{OACC+4*du+i}, 0")
    for du in range(2):
        k.e(f"ds_read_b64_tr_b16 v[{VF}:{VF+1}], v{vVrd} offset:{32*du}")
        k.e(f"ds_read_b64_tr_b16 v[{VF+2}:{VF+3}], v{vVrd} offset:{32*du+16*RS}")
        k.e(f"ds_read_b64_tr_b16 v[{VF+4}:{VF+5}], v{vVrd} offset:{32*du+32*RS}")
        k.e(f"ds_read_b64_tr_b16 v[{VF+6}:{VF+7}], v{vVrd} offset:{32*du+32*RS}")
        k.e("s_waitcnt lgkmcnt(0)")
        k.e(f"v_mfma_f32_16x16x32_bf16 v[{OACC+4*du}:{OACC+4*du+3}], v[{VF}:{VF+3}], v[{PF}:{PF+3}], v[{OACC+4*du}:{OACC+4*du+3}]")
        k.e(f"v_mfma_f32_16x16x32_bf16 v[{OACC+4*du}:{OACC+4*du+3}], v[{VF+4}:{VF+7}], v[{PF+4}:{PF+7}], v[{OACC+4*du}:{OACC+4*du+3}]")
    k.e("s_nop 7")
    k.e("s_nop 3")
    for du in range(2):
        k.e(f"v_cvt_pk_bf16_f32 v{vT1}, v{OACC+4*du}, v{OACC+4*du+1}")
        k.e(f"v_cvt_pk_bf16_f32 v{vT2}, v{OACC+4*du+2}, v{OACC+4*du+3}")
        k.e(f"ds_write_b64 v{vOwr}, v[{vT1}:{vT2}] offset:{32*du}")
    k.e("s_waitcnt lgkmcnt(0)")
    k.e("s_barrier")
    if os.environ.get('REC_DUMP'):
        k.e(f"v_lshlrev_b32 v{vT1}, 4, v0")
        k.e("s_mul_i32 s24, s2, 65536")
        k.e(f"s_add_u32 s24, s24, {128*MiB}")
        for i in range(9):
            k.e(f"ds_read_b128 v[{MF+32}:{MF+35}], v{vT1} offset:{4096*i}")
            k.e("s_waitcnt lgkmcnt(0)")
            k.e(f"buffer_store_dwordx4 v[{MF+32}:{MF+35}], v{vT1}, s[4:7], s24 offen offset:0")
            k.e("s_add_u32 s24, s24, 4096")
            k.e("s_waitcnt vmcnt(0)")
        k.e(f"s_branch {end}")
    stamp(5)
    OF = MF + 32
    for ks in range(4):
        k.e(f"ds_read_b128 v[{OF+4*ks}:{OF+4*ks+3}], v{vKrd} offset:{OL+64*ks}")
    for u in range(2):
        for i in range(4):
            k.e(f"v_mov_b32 v{ACC+4*u+i}, 0")
    k.e("s_waitcnt lgkmcnt(0)")
    for u in range(2):
        for ks in range(4):
            w = WO + (u * 4 + ks) * 4
            k.e(f"v_mfma_f32_16x16x32_bf16 v[{ACC+4*u}:{ACC+4*u+3}], v[{w}:{w+3}], v[{OF+4*ks}:{OF+4*ks+3}], v[{ACC+4*u}:{ACC+4*u+3}]")
    k.e("s_nop 7")
    k.e("s_nop 3")
    k.e(f"s_mul_i32 s24, s29, {32*65536}")
    k.e(f"s_add_u32 s24, s24, {PART_OFF}")
    k.e(f"v_cmp_gt_u32 vcc, 8, v{vM}")
    k.e("s_and_saveexec_b64 s[32:33], vcc")
    for u in range(2):
        a = ACC + 4 * u
        k.e(f"v_mov_b32 v{MF}, v{a}")
        k.e(f"v_mov_b32 v{MF+1}, s23")
        k.e(f"v_mov_b32 v{MF+2}, v{a+1}")
        k.e(f"v_mov_b32 v{MF+3}, s23")
        k.e(f"v_mov_b32 v{MF+4}, v{a+2}")
        k.e(f"v_mov_b32 v{MF+5}, s23")
        k.e(f"v_mov_b32 v{MF+6}, v{a+3}")
        k.e(f"v_mov_b32 v{MF+7}, s23")
        k.e(f"buffer_store_dwordx4 v[{MF}:{MF+3}], v{vPst}, s[4:7], s24 offen offset:{1024*u} {SCF}")
        k.e(f"buffer_store_dwordx4 v[{MF+4}:{MF+7}], v{vPst}, s[4:7], s24 offen offset:{1024*u+16} {SCF}")
        k.e("s_nop 1")
    k.e("s_mov_b64 exec, s[32:33]")
    stamp(6)
    nored = k.newlabel("nored")
    k.e("s_cmp_lg_u32 s3, 0")
    k.e(f"s_cbranch_scc1 {nored}")
    k.e("s_mov_b32 s30, 0")
    pl = k.newlabel("pollp")
    k.label(pl)
    k.e("s_mov_b32 s25, s24")
    for m8 in range(8):
        k.e(f"buffer_load_dwordx4 v[{MF+4*m8}:{MF+4*m8+3}], v{vPld}, s[4:7], s25 offen {SCF}")
        k.e("s_add_u32 s25, s25, 262144")
    k.e("s_waitcnt vmcnt(0)")
    k.e(f"v_xor_b32 v{vT0}, s23, v{MF+1}")
    k.e(f"v_xor_b32 v{vT1}, s23, v{MF+3}")
    for q in range(1, 8):
        k.e(f"v_xor_b32 v{vT2}, s23, v{MF+4*q+1}")
        k.e(f"v_xor_b32 v{vT3}, s23, v{MF+4*q+3}")
        k.e(f"v_or3_b32 v{vT0}, v{vT0}, v{vT2}, v{vT3}")
    k.e(f"v_or_b32 v{vT0}, v{vT0}, v{vT1}")
    k.e(f"v_cmp_ne_u32 vcc, 0, v{vT0}")
    k.e("s_add_u32 s30, s30, 1")
    k.e(f"s_cmp_ge_u32 s30, {POLL_MAX}")
    k.e(f"s_cbranch_scc1 {end}")
    okl = k.newlabel("ok")
    k.e(f"s_cbranch_vccz {okl}")
    if SLEEP:
        k.e(f"s_sleep {SLEEP}")
    k.e(f"s_branch {pl}")
    k.label(okl)
    for q in range(1, 8):
        k.e(f"v_add_f32 v{MF}, v{MF}, v{MF+4*q}")
        k.e(f"v_add_f32 v{MF+2}, v{MF+2}, v{MF+4*q+2}")
    for x in (16, 32):
        k.e(f"v_xor_b32 v{vT1}, {x}, v{vL}")
        k.e(f"v_lshlrev_b32 v{vT1}, 2, v{vT1}")
        k.e(f"ds_bpermute_b32 v{vT2}, v{vT1}, v{MF}")
        k.e(f"ds_bpermute_b32 v{vT3}, v{vT1}, v{MF+2}")
        k.e("s_waitcnt lgkmcnt(0)")
        k.e(f"v_add_f32 v{MF}, v{MF}, v{vT2}")
        k.e(f"v_add_f32 v{MF+2}, v{MF+2}, v{vT3}")
    k.e(f"v_cvt_pk_bf16_f32 v{MF}, v{MF}, v{MF+2}")
    k.e(f"v_mov_b32 v{MF+1}, s23")
    k.e("s_xor_b32 s25, s29, 1")
    k.e("s_lshl_b32 s25, s25, 15")
    k.e(f"s_add_u32 s25, s25, {MEMX_OFF}")
    k.e(f"v_cmp_gt_u32 vcc, 16, v{vL}")
    k.e("s_and_saveexec_b64 s[32:33], vcc")
    k.e(f"buffer_store_dwordx2 v[{MF}:{MF+1}], v{vMXst}, s[4:7], s25 offen {SCF}")
    k.e("s_mov_b64 exec, s[32:33]")
    stamp(7)
    k.label(nored)
    k.e("s_barrier")
    k.e("s_add_u32 s22, s22, 1")
    k.e(f"s_branch {step}")
    k.label(end)
    return k, NV, LDS_BYTES


def clear_pre(k):
    n = (HAND_END - HAND_OFF + 16383) // 16384
    lb = k.newlabel("noclr")
    k.e(f"s_cmp_ge_u32 s2, {n}")
    k.e(f"s_cbranch_scc1 {lb}")
    srd(k, 4, 64, 65, "0x10000000")
    k.e("s_lshl_b32 s72, s2, 14")
    k.e(f"s_add_u32 s72, s72, {HAND_OFF}")
    k.e("v_lshlrev_b32 v1, 4, v0")
    k.e("v_mov_b32 v2, 0")
    k.e("v_mov_b32 v3, 0")
    k.e("v_mov_b32 v4, 0")
    k.e("v_mov_b32 v5, 0")
    k.e("buffer_store_dwordx4 v[2:5], v1, s[4:7], s72 offen")
    k.e("s_add_u32 s72, s72, 8192")
    k.e("buffer_store_dwordx4 v[2:5], v1, s[4:7], s72 offen")
    k.label(lb)


def softmax_tail(k, SC, n, vL, vT0, vT1, vT2):
    k.e(f"v_max3_f32 v{vT0}, v{SC}, v{SC+1}, v{SC+2}")
    q = 3
    while q < n:
        if q + 1 < n:
            k.e(f"v_max3_f32 v{vT0}, v{vT0}, v{SC+q}, v{SC+q+1}")
            q += 2
        else:
            k.e(f"v_max_f32 v{vT0}, v{vT0}, v{SC+q}")
            q += 1
    for x in (16, 32):
        k.e(f"v_xor_b32 v{vT1}, {x}, v{vL}")
        k.e(f"v_lshlrev_b32 v{vT1}, 2, v{vT1}")
        k.e(f"ds_bpermute_b32 v{vT2}, v{vT1}, v{vT0}")
        k.e("s_waitcnt lgkmcnt(0)")
        k.e(f"v_max_f32 v{vT0}, v{vT0}, v{vT2}")
    k.e("s_mov_b32 s24, 0x3fb8aa3b")
    for q in range(n):
        k.e(f"v_sub_f32 v{SC+q}, v{SC+q}, v{vT0}")
        k.e(f"v_mul_f32 v{SC+q}, s24, v{SC+q}")
        k.e(f"v_exp_f32 v{SC+q}, v{SC+q}")
    k.e("s_nop 0")
    k.e(f"v_add_f32 v{vT0}, v{SC}, v{SC+1}")
    for q in range(2, n):
        k.e(f"v_add_f32 v{vT0}, v{vT0}, v{SC+q}")
    for x in (16, 32):
        k.e(f"v_xor_b32 v{vT1}, {x}, v{vL}")
        k.e(f"v_lshlrev_b32 v{vT1}, 2, v{vT1}")
        k.e(f"ds_bpermute_b32 v{vT2}, v{vT1}, v{vT0}")
        k.e("s_waitcnt lgkmcnt(0)")
        k.e(f"v_add_f32 v{vT0}, v{vT0}, v{vT2}")
    k.e(f"v_rcp_f32 v{vT0}, v{vT0}")
    k.e("s_nop 0")
    for q in range(n):
        k.e(f"v_mul_f32 v{SC+q}, v{SC+q}, v{vT0}")


def round_scale(k, SC, n, scale_hex):
    k.e(f"s_mov_b32 s24, {scale_hex}")
    for q in range(n):
        k.e(f"v_cvt_pk_bf16_f32 v{SC+q}, v{SC+q}, v{SC+q}")
        k.e(f"v_lshlrev_b32 v{SC+q}, 16, v{SC+q}")
        k.e(f"v_mul_f32 v{SC+q}, s24, v{SC+q}")
        k.e(f"v_cvt_pk_bf16_f32 v{SC+q}, v{SC+q}, v{SC+q}")
        k.e(f"v_lshlrev_b32 v{SC+q}, 16, v{SC+q}")


def attnB_kernel(name):
    k = K(name)
    RS = 272
    vL, vM, vG, vT0, vT1, vT2, vT3 = 1, 2, 3, 4, 6, 7, 8
    vA0, vA1, vVrd, vVw = 9, 10, 11, 12
    QF = 16
    KF = 48
    SC = 64
    PF = 76
    VF = 92
    OA = 100
    NV = 108
    end = f"{name}_end"
    k.e("s_cmp_ge_u32 s2, 512")
    k.e(f"s_cbranch_scc1 {end}")
    k.e("s_load_dwordx2 s[64:65], s[0:1], 96")
    k.e(f"v_and_b32 v{vL}, 63, v0")
    k.e(f"v_lshrrev_b32 v{vT0}, 6, v0")
    k.e("s_nop 1")
    k.e(f"v_readfirstlane_b32 s3, v{vT0}")
    k.e(f"v_and_b32 v{vM}, 15, v{vL}")
    k.e(f"v_lshrrev_b32 v{vG}, 4, v{vL}")
    k.e("s_lshr_b32 s20, s2, 3")
    k.e("s_and_b32 s21, s2, 7")
    k.e("s_lshl_b32 s21, s21, 2")
    k.e("s_add_u32 s21, s21, s3")
    k.e("s_waitcnt lgkmcnt(0)")
    srd(k, 4, 64, 65, "0x10000000")
    k.e("s_mov_b32 s24, 24576")
    k.e(f"v_mul_lo_u32 v{vA0}, v{vM}, s24")
    k.e(f"v_lshl_add_u32 v{vA0}, v{vG}, 4, v{vA0}")
    k.e(f"s_mul_i32 s25, s20, {32*24576}")
    k.e("s_lshl_b32 s26, s21, 8")
    k.e("s_add_u32 s25, s25, s26")
    k.e(f"s_add_u32 s25, s25, {QKVB_OFF}")
    for qt in range(2):
        k.e(f"s_add_u32 s27, s25, {qt*16*24576}")
        for ks in range(4):
            k.e(f"buffer_load_dwordx4 v[{QF+16*qt+4*ks}:{QF+16*qt+4*ks+3}], v{vA0}, s[4:7], s27 offen offset:{64*ks}")
    k.e(f"s_mul_i32 s28, s3, {48*RS}")
    k.e(f"v_lshrrev_b32 v{vT0}, 4, v{vL}")
    k.e(f"v_mul_lo_u32 v{vT1}, v{vT0}, s24")
    k.e(f"v_lshl_add_u32 v{vT1}, v{vM}, 4, v{vT1}")
    k.e(f"v_mul_u32_u24 v{vVw}, {RS}, v{vT0}")
    k.e(f"v_lshl_add_u32 v{vVw}, v{vM}, 4, v{vVw}")
    k.e(f"v_add_u32 v{vVw}, s28, v{vVw}")
    k.e(f"s_add_u32 s27, s25, 16384")
    for i in range(8):
        k.e(f"buffer_load_dwordx4 v[{KF+4*(i%4)}:{KF+4*(i%4)+3}], v{vT1}, s[4:7], s27 offen")
        k.e(f"s_add_u32 s27, s27, {4*24576}")
        if i % 4 == 3:
            k.e("s_waitcnt vmcnt(0)")
            for i2 in range(4):
                k.e(f"ds_write_b128 v{vVw}, v[{KF+4*i2}:{KF+4*i2+3}] offset:{(i-3+i2)*4*RS}")
    k.e(f"v_lshlrev_b32 v{vT2}, 14, v{vT0}")
    k.e(f"v_lshl_add_u32 v{vT2}, v{vM}, 4, v{vT2}")
    k.e("s_lshl_b32 s27, s20, 17")
    k.e("s_add_u32 s27, s27, s26")
    k.e(f"s_add_u32 s29, s27, {MEMKV_OFF}")
    k.e("s_add_u32 s27, s29, 8192")
    for i in range(2):
        k.e(f"buffer_load_dwordx4 v[{KF+4*i}:{KF+4*i+3}], v{vT2}, s[4:7], s27 offen")
        k.e("s_add_u32 s27, s27, 65536")
    for i in range(4):
        k.e(f"v_mov_b32 v{KF+8+i}, 0")
    k.e("s_waitcnt vmcnt(0)")
    for i in range(2):
        k.e(f"ds_write_b128 v{vVw}, v[{KF+4*i}:{KF+4*i+3}] offset:{(32+4*i)*RS}")
    for i in range(2):
        k.e(f"ds_write_b128 v{vVw}, v[{KF+8}:{KF+11}] offset:{(40+4*i)*RS}")
    k.e(f"v_lshrrev_b32 v{vT0}, 2, v{vM}")
    k.e(f"v_lshl_add_u32 v{vT0}, v{vG}, 2, v{vT0}")
    k.e(f"v_mul_u32_u24 v{vT0}, {RS}, v{vT0}")
    k.e(f"v_and_b32 v{vT1}, 3, v{vL}")
    k.e(f"v_lshl_add_u32 v{vT0}, v{vT1}, 3, v{vT0}")
    k.e(f"v_add_u32 v{vVrd}, s28, v{vT0}")
    k.e(f"v_and_b32 v{vT0}, 7, v{vM}")
    k.e(f"v_lshlrev_b32 v{vT0}, 14, v{vT0}")
    k.e(f"v_lshl_add_u32 v{vA1}, v{vG}, 4, v{vT0}")
    for qt in range(2):
        for T in range(3):
            for i in range(4):
                k.e(f"v_mov_b32 v{SC+4*T+i}, 0")
        for T in range(3):
            if T < 2:
                k.e(f"s_add_u32 s27, s25, {8192 + T*16*24576}")
                for ks in range(4):
                    k.e(f"buffer_load_dwordx4 v[{KF+4*ks}:{KF+4*ks+3}], v{vA0}, s[4:7], s27 offen offset:{64*ks}")
            else:
                for ks in range(4):
                    k.e(f"buffer_load_dwordx4 v[{KF+4*ks}:{KF+4*ks+3}], v{vA1}, s[4:7], s29 offen offset:{64*ks}")
            k.e("s_waitcnt vmcnt(0)")
            for ks in range(4):
                k.e(f"v_mfma_f32_16x16x32_bf16 v[{SC+4*T}:{SC+4*T+3}], v[{KF+4*ks}:{KF+4*ks+3}], v[{QF+16*qt+4*ks}:{QF+16*qt+4*ks+3}], v[{SC+4*T}:{SC+4*T+3}]")
        k.e("s_nop 7")
        k.e("s_nop 3")
        round_scale(k, SC, 12, "0x3db504f3")
        k.e("s_mov_b32 s24, 0xf149f2ca")
        for T in range(2):
            for r in range(4):
                k.e(f"v_lshl_add_u32 v{vT0}, v{vG}, 2, {16*T + r - 16*qt}")
                k.e(f"v_cmp_gt_i32 vcc, v{vT0}, v{vM}")
                k.e(f"v_mov_b32 v{vT1}, s24")
                k.e(f"v_cndmask_b32 v{SC+4*T+r}, v{SC+4*T+r}, v{vT1}, vcc")
        k.e(f"v_cmp_le_u32 vcc, 2, v{vG}")
        k.e(f"v_mov_b32 v{vT1}, s24")
        for r in range(4):
            k.e(f"v_cndmask_b32 v{SC+8+r}, v{SC+8+r}, v{vT1}, vcc")
        softmax_tail(k, SC, 12, vL, vT0, vT1, vT2)
        P = PF + 8 * qt
        for i in range(6):
            k.e(f"v_cvt_pk_bf16_f32 v{P+i}, v{SC+2*i}, v{SC+2*i+1}")
        k.e(f"v_mov_b32 v{P+6}, 0")
        k.e(f"v_mov_b32 v{P+7}, 0")
    k.e("s_waitcnt lgkmcnt(0)")
    k.e(f"v_lshlrev_b32 v{vT3}, 13, v{vM}")
    k.e(f"v_lshl_add_u32 v{vT3}, v{vG}, 3, v{vT3}")
    k.e("s_lshl_b32 s27, s20, 18")
    k.e("s_add_u32 s27, s27, s26")
    k.e(f"s_add_u32 s27, s27, {OB_OFF}")
    for dt in range(8):
        k.e(f"ds_read_b64_tr_b16 v[{VF}:{VF+1}], v{vVrd} offset:{32*dt}")
        k.e(f"ds_read_b64_tr_b16 v[{VF+2}:{VF+3}], v{vVrd} offset:{32*dt+16*RS}")
        k.e(f"ds_read_b64_tr_b16 v[{VF+4}:{VF+5}], v{vVrd} offset:{32*dt+32*RS}")
        k.e(f"ds_read_b64_tr_b16 v[{VF+6}:{VF+7}], v{vVrd} offset:{32*dt+32*RS}")
        k.e("s_waitcnt lgkmcnt(0)")
        for qt in range(2):
            P = PF + 8 * qt
            k.e(f"v_mfma_f32_16x16x32_bf16 v[{OA}:{OA+3}], v[{VF}:{VF+3}], v[{P}:{P+3}], 0")
            k.e(f"v_mfma_f32_16x16x32_bf16 v[{OA}:{OA+3}], v[{VF+4}:{VF+7}], v[{P+4}:{P+7}], v[{OA}:{OA+3}]")
            k.e("s_nop 7")
            k.e("s_nop 3")
            k.e(f"v_cvt_pk_bf16_f32 v{vT1}, v{OA}, v{OA+1}")
            k.e(f"v_cvt_pk_bf16_f32 v{vT2}, v{OA+2}, v{OA+3}")
            k.e(f"s_add_u32 s30, s27, {qt*16*8192}")
            k.e(f"buffer_store_dwordx2 v[{vT1}:{vT2}], v{vT3}, s[4:7], s30 offen offset:{32*dt}")
            k.e("s_nop 1")
    k.label(end)
    return k, NV, 4 * 48 * RS


def attnA_kernel(name):
    k = K(name)
    RSV = 80
    vL, vM, vG, vT0, vT1, vT2, vT3 = 1, 2, 3, 4, 6, 7, 8
    vA0, vVrd = 9, 10
    QF = 12
    KF = 16
    SC = 32
    PF = 100
    VF = 136
    OA = 140
    NV = 148
    end = f"{name}_end"
    k.e("s_cmp_ge_u32 s2, 1024")
    k.e(f"s_cbranch_scc1 {end}")
    k.e("s_load_dwordx2 s[64:65], s[0:1], 96")
    k.e(f"v_and_b32 v{vL}, 63, v0")
    k.e(f"v_lshrrev_b32 v{vT0}, 6, v0")
    k.e("s_nop 1")
    k.e(f"v_readfirstlane_b32 s3, v{vT0}")
    k.e(f"v_and_b32 v{vM}, 15, v{vL}")
    k.e(f"v_lshrrev_b32 v{vG}, 4, v{vL}")
    k.e("s_and_b32 s20, s2, 31")
    k.e("s_lshr_b32 s21, s2, 5")
    k.e("s_waitcnt lgkmcnt(0)")
    srd(k, 4, 64, 65, "0x10000000")
    k.e("s_lshl_b32 s22, s21, 6")
    k.e("s_lshl_b32 s23, s3, 4")
    k.e("s_add_u32 s23, s23, s22")
    k.e("s_mov_b32 s24, 6144")
    k.e(f"v_mul_lo_u32 v{vA0}, v{vM}, s24")
    k.e(f"v_lshl_add_u32 v{vA0}, v{vG}, 4, v{vA0}")
    k.e("s_lshl_b32 s26, s20, 6")
    k.e("s_mul_i32 s27, s23, 6144")
    k.e("s_add_u32 s27, s27, s26")
    k.e(f"buffer_load_dwordx4 v[{QF}:{QF+3}], v{vA0}, s[4:7], s27 offen")
    k.e(f"v_lshrrev_b32 v{vT0}, 2, v0")
    k.e(f"v_and_b32 v{vT1}, 3, v0")
    k.e(f"v_mul_u32_u24 v{vT3}, {RSV}, v{vT0}")
    k.e(f"v_lshl_add_u32 v{vT3}, v{vT1}, 4, v{vT3}")
    for i in range(5):
        k.e(f"s_add_i32 s27, s22, {64*i-256}")
        k.e(f"v_add_u32 v{vT2}, s27, v{vT0}")
        k.e(f"v_max_i32 v{vT2}, 0, v{vT2}")
        k.e(f"v_mul_lo_u32 v{vT2}, v{vT2}, s24")
        k.e(f"v_lshl_add_u32 v{vT2}, v{vT1}, 4, v{vT2}")
        k.e(f"s_add_u32 s28, s26, 4096")
        k.e(f"buffer_load_dwordx4 v[{KF}:{KF+3}], v{vT2}, s[4:7], s28 offen")
        k.e("s_waitcnt vmcnt(0)")
        k.e(f"ds_write_b128 v{vT3}, v[{KF}:{KF+3}] offset:{64*i*RSV}")
    k.e("s_waitcnt lgkmcnt(0)")
    k.e("s_barrier")
    for kt in range(17):
        k.e(f"s_add_i32 s27, s23, {16*kt-256}")
        k.e(f"v_add_u32 v{vT2}, s27, v{vM}")
        k.e(f"v_max_i32 v{vT2}, 0, v{vT2}")
        k.e(f"v_mul_lo_u32 v{vT2}, v{vT2}, s24")
        k.e(f"v_lshl_add_u32 v{vT2}, v{vG}, 4, v{vT2}")
        k.e(f"s_add_u32 s28, s26, 2048")
        k.e(f"buffer_load_dwordx4 v[{KF+4*(kt%4)}:{KF+4*(kt%4)+3}], v{vT2}, s[4:7], s28 offen")
        if kt % 4 == 3 or kt == 16:
            k.e("s_waitcnt vmcnt(0)")
            for k2 in range(kt - (kt % 4), kt + 1):
                k.e(f"v_mfma_f32_16x16x32_bf16 v[{SC+4*k2}:{SC+4*k2+3}], v[{KF+4*(k2%4)}:{KF+4*(k2%4)+3}], v[{QF}:{QF+3}], 0")
    k.e("s_nop 7")
    k.e("s_nop 3")
    round_scale(k, SC, 68, "0x3e3504f3")
    k.e("s_mov_b32 s24, 0xf149f2ca")
    k.e(f"v_lshlrev_b32 v{vT3}, 2, v{vG}")
    k.e(f"v_sub_u32 v{vT3}, v{vM}, v{vT3}")
    k.e(f"v_mov_b32 v{vT1}, s24")
    for kt in range(17):
        for r in range(4):
            k.e(f"v_add_u32 v{vT0}, {256-16*kt-r}, v{vT3}")
            k.e(f"v_cmp_lt_u32 vcc, 255, v{vT0}")
            k.e(f"v_cndmask_b32 v{SC+4*kt+r}, v{SC+4*kt+r}, v{vT1}, vcc")
            k.e(f"s_add_i32 s27, s23, {16*kt-256+r}")
            k.e(f"v_lshl_add_u32 v{vT2}, v{vG}, 2, s27")
            k.e(f"v_cmp_gt_i32 vcc, 0, v{vT2}")
            k.e(f"v_cndmask_b32 v{SC+4*kt+r}, v{SC+4*kt+r}, v{vT1}, vcc")
    softmax_tail(k, SC, 68, vL, vT0, vT1, vT2)
    for i in range(34):
        k.e(f"v_cvt_pk_bf16_f32 v{PF+i}, v{SC+2*i}, v{SC+2*i+1}")
    k.e(f"v_mov_b32 v{PF+34}, 0")
    k.e(f"v_mov_b32 v{PF+35}, 0")
    k.e(f"v_lshrrev_b32 v{vT0}, 2, v{vM}")
    k.e(f"v_lshl_add_u32 v{vT0}, v{vG}, 2, v{vT0}")
    k.e("s_lshl_b32 s27, s3, 4")
    k.e(f"v_add_u32 v{vT0}, s27, v{vT0}")
    k.e(f"v_mul_u32_u24 v{vT0}, {RSV}, v{vT0}")
    k.e(f"v_and_b32 v{vT1}, 3, v{vL}")
    k.e(f"v_lshl_add_u32 v{vVrd}, v{vT1}, 3, v{vT0}")
    for dt in range(2):
        for i in range(4):
            k.e(f"v_mov_b32 v{OA+4*dt+i}, 0")
    for kp in range(9):
        for dt in range(2):
            k.e(f"ds_read_b64_tr_b16 v[{VF}:{VF+1}], v{vVrd} offset:{32*dt+32*kp*RSV}")
            kt2 = min(2 * kp + 1, 16)
            k.e(f"ds_read_b64_tr_b16 v[{VF+2}:{VF+3}], v{vVrd} offset:{32*dt+16*kt2*RSV}")
            k.e("s_waitcnt lgkmcnt(0)")
            k.e(f"v_mfma_f32_16x16x32_bf16 v[{OA+4*dt}:{OA+4*dt+3}], v[{VF}:{VF+3}], v[{PF+4*kp}:{PF+4*kp+3}], v[{OA+4*dt}:{OA+4*dt+3}]")
    k.e("s_nop 7")
    k.e("s_nop 3")
    k.e(f"v_lshlrev_b32 v{vT3}, 11, v{vM}")
    k.e(f"v_lshl_add_u32 v{vT3}, v{vG}, 3, v{vT3}")
    k.e("s_lshl_b32 s27, s23, 11")
    k.e("s_add_u32 s27, s27, s26")
    k.e(f"s_add_u32 s27, s27, {OA_OFF}")
    for dt in range(2):
        k.e(f"v_cvt_pk_bf16_f32 v{vT1}, v{OA+4*dt}, v{OA+4*dt+1}")
        k.e(f"v_cvt_pk_bf16_f32 v{vT2}, v{OA+4*dt+2}, v{OA+4*dt+3}")
        k.e(f"buffer_store_dwordx2 v[{vT1}:{vT2}], v{vT3}, s[4:7], s27 offen offset:{32*dt}")
        k.e("s_nop 1")
    k.label(end)
    return k, NV, 320 * RSV


def decode_g2(k):
    lb = k.newlabel("g2a")
    ld = k.newlabel("g2d")
    k.e("s_and_b32 s76, s2, 127")
    k.e("s_lshr_b32 s72, s76, 3")
    k.e("s_and_b32 s73, s76, 7")
    k.e("s_lshl_b32 s75, s73, 8")
    k.e(f"s_mul_i32 s74, s72, {128*4096}")
    k.e("s_add_u32 s74, s74, s75")
    k.e("s_cmp_ge_u32 s2, 128")
    k.e(f"s_cbranch_scc1 {lb}")
    k.e(f"s_mul_i32 s77, s72, {128*8192}")
    k.e(f"s_add_u32 s77, s77, {OB_OFF}")
    add64(k, 20, 21, 64, 65, 77)
    add64(k, 22, 23, 56, 57, 75)
    k.e("s_add_u32 s74, s74, 2048")
    add64(k, 24, 25, 60, 61, 74)
    k.e("s_mov_b32 s26, 8192")
    k.e("s_mov_b32 s29, 64")
    k.e(f"s_branch {ld}")
    k.label(lb)
    k.e(f"s_mul_i32 s77, s72, {128*2048}")
    k.e(f"s_add_u32 s77, s77, {OA_OFF}")
    add64(k, 20, 21, 64, 65, 77)
    add64(k, 22, 23, 44, 45, 75)
    add64(k, 24, 25, 60, 61, 74)
    k.e("s_mov_b32 s26, 2048")
    k.e("s_mov_b32 s29, 16")
    k.label(ld)
    k.e("s_mov_b32 s27, 2048")
    k.e("s_mov_b32 s28, 4096")


def main():
    out = []
    launches = []
    g1, nv = gemm_kernel("gemm1_kernel", 256, 256, 4, 2, decode_g1, 96 + 384, pre=clear_pre)
    out.append(kernel_wrap(g1, nv))
    launches.append(("gemm1_kernel", 480, 512, 131072))
    rk, nv, lds = rec_kernel("rec_kernel")
    out.append(kernel_wrap(rk, nv))
    launches.append(("rec_kernel", 256, 256, lds))
    ak, nv, lds = attnA_kernel("attnA_kernel")
    out.append(kernel_wrap(ak, nv))
    launches.append(("attnA_kernel", 1024, 256, lds))
    bk, nv, lds = attnB_kernel("attnB_kernel")
    out.append(kernel_wrap(bk, nv))
    launches.append(("attnB_kernel", 512, 256, lds))
    g2, nv = gemm_kernel("gemm2_kernel", 128, 128, 2, 2, decode_g2, 256)
    out.append(kernel_wrap(g2, nv))
    launches.append(("gemm2_kernel", 256, 256, 65536))
    hdr = []
    for (n, g, b, lds) in launches:
        hdr.append(f"; @launch kernel={n} grid=({g},1,1) block=({b},1,1) lds={lds}")
    hdr.append('.amdgcn_target "amdgcn-amd-amdhsa--gfx950"')
    print("\n".join(hdr) + "\n" + "\n".join(out))


if __name__ == "__main__":
    main()
```
